```python
import torch

def _softmax(x, axis=-1):
    return torch.softmax(x, dim=axis)
def _gelu(x):
    return torch.nn.functional.gelu(x, approximate="tanh")
def _silu(x):
    return torch.nn.functional.silu(x)
def _sigmoid(x):
    return torch.sigmoid(x)
def _layernorm(x, axis=-1, eps=1e-5):
    m = x.mean(dim=axis, keepdim=True)
    v = x.var(dim=axis, keepdim=True, unbiased=False)
    return (x - m) / torch.sqrt(v + eps)
def _scatter_add(tgt, idx, src, axis=0):
    return tgt.clone().index_add_(axis, idx, src)
def _segment_sum(src, seg, n):
    out = torch.zeros((n,) + src.shape[1:], dtype=src.dtype)
    return out.index_add_(0, seg, src)
def _pad(x, pw):
    flat = tuple(v for pair in reversed(pw) for v in pair)
    return torch.nn.functional.pad(x, flat)

kernel_name = 'parallel_sum__sliding_local_dilated__dense_activation_relu__prompt'

def setup_inputs():

    _w = (lambda a: (lambda t: t.to(torch.bfloat16) if t.is_floating_point() else t)(torch.as_tensor(a)))
    def _A_setup():
        B, S, D = 1, 2048, 640
        return {
            "x": _w((lambda *s: torch.randn(*s, dtype=torch.bfloat16) * 0.05)(B, S, D)),
            "wqkv": _w((lambda *s: torch.randn(*s, dtype=torch.bfloat16) * 0.05)(D, 3 * D)),
            "wo": _w((lambda *s: torch.randn(*s, dtype=torch.bfloat16) * 0.05)(D, D)),
        }
    _A_in = _A_setup()

    def _B_setup():
        B, S, D, Dff = 1, 2048, 640, 1728
        return {
            "x": _w((lambda *s: torch.randn(*s, dtype=torch.bfloat16) * 0.05)(B, S, D)),
            "w1": _w((lambda *s: torch.randn(*s, dtype=torch.bfloat16) * 0.05)(D, Dff)),
            "w2": _w((lambda *s: torch.randn(*s, dtype=torch.bfloat16) * 0.05)(Dff, D)),
        }
    _B_in = _B_setup()

    return {
        "A_x": _A_in["x"],
        "A_wqkv": _A_in["wqkv"],
        "A_wo": _A_in["wo"],
        "B_x": _B_in["x"],
        "B_w1": _B_in["w1"],
        "B_w2": _B_in["w2"],
    }

def reference(A_x, A_wqkv, A_wo, B_x, B_w1, B_w2):
    def _A_ref(x, wqkv, wo):
        B, S, D = x.shape
        H = 32; Dh = D // H
        W, dil = 8, 2
        qkv = (lambda x, *d: x.permute(*d))((x @ wqkv).reshape(B, S, 3, H, Dh), 2, 0, 3, 1, 4)
        q, k, v = qkv[0], qkv[1], qkv[2]
        scale = Dh ** -0.5
        pos = torch.arange(S)
        off = torch.arange(W) * dil
        idx = pos[:, None] - off[None, :]
        mask = idx >= 0
        idx_c = torch.where(mask, idx, 0).reshape(-1)
        kg = k[:, :, idx_c, :].reshape(B, H, S, W, Dh)
        vg = v[:, :, idx_c, :].reshape(B, H, S, W, Dh)
        logits = torch.einsum("bhsd,bhswd->bhsw", q, kg) * scale
        logits = torch.where(mask[None, None, :, :], logits, -1e9)
        attn = _softmax(logits, axis=-1)
        o = torch.einsum("bhsw,bhswd->bhsd", attn, vg)
        return (lambda x, *d: x.permute(*d))(o, 0, 2, 1, 3).reshape(B, S, D) @ wo

    def _B_ref(x, w1, w2):
        h = torch.einsum("bsd,df->bsf", x, w1)
        zero = torch.zeros_like(h)
        h = torch.maximum(h, zero)
        return torch.einsum("bsf,fd->bsd", h, w2)

    x = A_x
    xn = _layernorm(x, axis=-1)
    return x + _A_ref(xn, A_wqkv, A_wo) + _B_ref(xn, B_w1, B_w2)
```

```python
class Asm:
    def __init__(self):
        self.lines = []
        self.uid = 0
    def __call__(self, s=""):
        for l in s.split("\n"):
            l = l.strip()
            if l: self.lines.append(("" if l.endswith(":") else "  ") + l)
    def label(self, name): self.lines.append(name + ":")
    def newlabel(self, base):
        self.uid += 1
        return f"{base}_{self.uid}"
    def comment(self, s): self.lines.append("  ; " + s)
    def text(self): return "\n".join(self.lines) + "\n"

def vr(base, n=1):
    return f"v{base}" if n == 1 else f"v[{base}:{base+n-1}]"
def sr(base, n=1):
    return f"s{base}" if n == 1 else f"s[{base}:{base+n-1}]"

class LgkmTracker:
    def __init__(self):
        self.q = []
    def issue(self, tag): self.q.append(tag)
    def wait_for(self, asm, tags):
        idx = -1
        for i, t in enumerate(self.q):
            if t in tags: idx = i
        if idx < 0: return
        n = len(self.q) - 1 - idx
        assert n <= 15, f"lgkmcnt overflow {n}"
        asm(f"s_waitcnt lgkmcnt({n})")
        self.q = self.q[idx+1:]
```

```python
import re
TRANS = ('v_exp_f32','v_log_f32','v_rcp_f32','v_rsq_f32','v_sqrt_f32','v_sin_f32','v_cos_f32')
def regs(tok):
    tok = tok.strip()
    neg = tok.lstrip('-')
    if neg.startswith('abs(') or neg.startswith('|'):
        neg = neg.replace('abs(','').replace(')','').replace('|','')
    m = re.fullmatch(r'([vsa])(\d+)', neg)
    if m: return {(m.group(1), int(m.group(2)))}
    m = re.fullmatch(r'([vsa])\[(\d+):(\d+)\]', neg)
    if m: return {(m.group(1), i) for i in range(int(m.group(2)), int(m.group(3))+1)}
    if neg in ('vcc','vcc_lo','vcc_hi'): return {('vcc',0)}
    if neg in ('exec','exec_lo','exec_hi'): return {('exec',0)}
    if neg == 'm0': return {('m0',0)}
    return set()
def split_ops(rest):
    out=[]; depth=0; cur=''
    for ch in rest:
        if ch in '[(': depth+=1
        if ch in '])': depth-=1
        if ch==',' and depth==0: out.append(cur.strip()); cur=''
        else: cur+=ch
    if cur.strip(): out.append(cur.strip())
    res=[]
    for i,o in enumerate(out):
        parts=o.split()
        res.append(parts[0] if parts else '')
    return res, rest
class I:
    def __init__(s, line):
        s.line=line
        t=line.split(';')[0].strip()
        s.op = t.split()[0] if t else ''
        rest = t[len(s.op):].strip()
        s.ops, s.rest = split_ops(rest)
        op=s.op
        s.cls='other'; s.w=set(); s.r=set(); s.srcC=set(); s.srcAB=set()
        o=s.ops
        if op.startswith('v_mfma'):
            s.cls='mfma'; s.w=regs(o[0]); s.srcAB=regs(o[1])|regs(o[2]); s.srcC=regs(o[3]); s.r=s.srcAB|s.srcC
            s.passes = 8 if '32x32' in op else 4
        elif op.startswith('v_'):
            s.cls='valu'
            base=op.replace('_e32','').replace('_e64','').replace('_dpp','').replace('_sdwa','')
            s.base=base
            if base.startswith('v_cmp'):
                s.w=regs(o[0]);
                for x in o[1:]: s.r|=regs(x)
            elif base in ('v_permlane32_swap_b32','v_permlane16_swap_b32'):
                s.w=regs(o[0])|regs(o[1]); s.r=set(s.w); s.cls='perm'
            elif base in ('v_add_co_u32','v_sub_co_u32','v_addc_co_u32'):
                s.w=regs(o[0])|regs(o[1])
                for x in o[2:]: s.r|=regs(x)
            else:
                s.w=regs(o[0])
                for x in o[1:]: s.r|=regs(x)
                if base in ('v_fmac_f32','v_dot2c_f32_bf16','v_pk_fmac_f16'): s.r|=s.w
                if base=='v_cndmask_b32' and len(o)==3: s.r|={('vcc',0)}
            s.dpp = ('_dpp' in op) or ('row_' in s.rest) or ('quad_perm' in s.rest)
            s.trans = base in TRANS
            s.rfl = base in ('v_readfirstlane_b32','v_readlane_b32')
        elif op.startswith('ds_'):
            s.cls='ds'
            if op.startswith('ds_read') or op.startswith('ds_bpermute') or op.startswith('ds_swizzle'):
                s.w=regs(o[0])
                for x in o[1:]: s.r|=regs(x)
            else:
                for x in o: s.r|=regs(x)
        elif op.startswith('buffer_') or op.startswith('global_'):
            s.cls='vmem'
            islds = ' lds' in (' '+s.rest)
            if op in ('buffer_wbl2','buffer_inv'): pass
            elif 'load' in op and not islds:
                s.w=regs(o[0])
                for x in o[1:]: s.r|=regs(x)
            else:
                for x in o: s.r|=regs(x)
                s.lds=islds
            s.store = 'store' in op or 'atomic' in op
            s.wide = s.store and ('x4' in op or 'x3' in op)
            s.data = regs(o[0]) if s.store and op.startswith('buffer') else set()
            s.islds = islds
            if 'atomic' in op and 'sc0' in s.rest: s.w=regs(o[0])
        elif op.startswith('s_'):
            s.cls='salu'
            if op in ('s_waitcnt','s_barrier','s_nop','s_branch','s_endpgm','s_sleep','s_setprio') or op.startswith('s_cbranch') or op.startswith('s_cmp'):
                for x in o: s.r|=regs(x)
            else:
                s.w=regs(o[0])
                for x in o[1:]: s.r|=regs(x)
                if 'saveexec' in op: s.w|={('exec',0)}
        s.states = 1
        if op=='s_nop': s.states=int(o[0],0)+1
def need(prod, cons):
    n=0
    P,C=prod,cons
    vw = {x for x in P.w if x[0] in 'va'}
    if P.cls in ('valu','perm'):
        if C.cls=='mfma' and (vw & C.r): n=max(n,2)
        if C.cls=='perm' and (vw & C.r): n=max(n,2)
        if C.cls=='valu' and getattr(C,'dpp',False) and (vw & C.r): n=max(n,2)
        if C.cls=='valu' and getattr(C,'rfl',False) and (vw & C.r): n=max(n,1)
        if getattr(P,'trans',False) and C.cls in ('valu','perm','mfma') and (vw & C.r) and not getattr(C,'trans',False): n=max(n,1)
        if getattr(P,'trans',False) and C.cls in ('valu',) and (vw & C.r): n=max(n,1)
        sw = {x for x in P.w if x[0] in ('s','vcc')}
        if sw & C.r:
            if C.cls in ('valu','perm'): n=max(n,2)
            if C.cls=='vmem': n=max(n,5)
            if C.cls=='salu': n=max(n,3)
            if C.cls=='valu' and getattr(C,'rfl',False): n=max(n,4)
    if P.cls=='mfma':
        ps=P.passes
        if C.cls=='mfma':
            if P.w & C.srcAB: n=max(n, {4:8,8:12}[ps])
            if P.w & C.srcC:
                if P.w==C.srcC and getattr(C,'passes',0)==ps: pass
                else: n=max(n,{4:6,8:10}[ps])
            if (P.w & C.w) and not (P.w==C.w and P.w==C.srcC): n=max(n,{4:6,8:10}[ps])
        elif C.cls in ('valu','perm'):
            if P.w & (C.r|C.w): n=max(n,{4:8,8:12}[ps])
            if P.srcC & C.w: n=max(n,{4:3,8:7}[ps])
        elif C.cls in ('ds','vmem'):
            if P.w & (C.r|C.w): n=max(n,{4:8,8:12}[ps])
    if P.cls=='vmem' and getattr(P,'wide',False):
        if C.cls in ('valu','perm','mfma') and (P.data & C.w): n=max(n,2)
        elif (P.data & C.w): n=max(n,1)
    if P.cls=='ds' and P.op in ('ds_write_b128','ds_write_b96') :
        pass
    if P.cls=='salu' and ('m0',0) in P.w:
        if C.cls=='vmem' and getattr(C,'islds',False): n=max(n,1)
    return n
def fix(lines, window=16):
    out=[]; hist=[]
    nins=0
    for line in lines:
        t=line.split(';')[0].strip()
        if not t or t.endswith(':') or t.startswith('.'):
            out.append(line); continue
        c=I(t)
        req=0; dist=0
        for p in reversed(hist):
            k=need(p,c)
            if k>dist: req=max(req,k-dist)
            dist+=p.states
            if dist>=window: break
        while req>0:
            k=min(req,16)
            nop=I(f"s_nop {k-1}")
            out.append(f"  s_nop {k-1}")
            hist.append(nop); req-=k; nins+=1
        out.append(line); hist.append(c)
        if len(hist)>40: hist=hist[-40:]
    return out, nins
```

```python
from asmlib import *
import hazard, struct
import sched

class P:
    NW = 5; NX = 3; SLOT = 18432; D = 5
    rot = True; WD = 5; rotC = [0, 1, 2, 3]
    maxw = 2; maxx = 2; pollstep = 15; qpoll = 20; fbstep = 9; rlmode = 'split'; rlNE = 2; fbmode = 'tail17'; predelayQ = 12; predelayH = 0; rlstep = 6; ppdepth = 0; ppgap = 4; sleepA = 6; sleepB = 6; lsleep = 1
    ramp = [('x', 0), ('W', 0), ('W', 1)]
    rot2 = 8
    NS2 = 5; D2 = 6
    stamps = False
    stflags = "sc0 sc1"
    dry = False
    pf = False
    PFD = 4
    pf2 = False
    codepf = True
    pfhalf = False
    p2flags = 'sc1'
    latestore = True
    twogroup = False
    tlbtouch = False
    dbar = False
    pairwait = True
    ppQ = False
    fb2dense = True
    p2stamps = False
    hprio = 0
    swapq = False
    prioC = 0
    prioP = 0
    prioU = 0
    prioC2 = None
    prioP2 = None
    staged = False
    windows = None
    hdelay = 0
    outflags = ''
    skipx2 = False
    ostiter = 0
    residiter = 0
    rlrole = 'H'
    fqiter = 4
    p2noread = False
    nosched = False
    nodma = False
    nocons = False
    noutil = False
    xsplit = True

XPITCH = 1280; WQ_PITCH = 3840; W1_PITCH = 3456
OOB = 0x40000000
HF_OFF = 0; BF_OFF = 16 << 20; ST_OFF = 24 << 20; FL_OFF = 25 << 20; TS_OFF = 128 << 20
EPS = 1e-5
def f2u(x): return struct.unpack('<I', struct.pack('<f', x))[0]

S_SRD_X = 8; S_SRD_W = 12; S_SRD_WS = 16
S_W1P = 20
S_WAVE = 24; S_RT = 25; S_COL = 26; S_T0 = 27; S_T1 = 28; S_T2 = 29; S_CNT = 30
S_WSLOT = 31; S_WDELTA = 32; S_XSLOT = 33; S_XDELTA = 34; S_THETA = 35; S_D0 = 36
S_WOFF = 37; S_XOFF = 38; S_WLDS = 39; S_XLDS = 40; S_STG = 41
S_MASK = 42
S_DRY = 44; S_LI = 45; S_CC = 46; S_TT = 47
S_T3 = 48; S_T4 = 49; S_IDX = 50; S_KSX = 51
S_SLOTC = 52; S_NEGW = 53; S_NEGX = 54; S_T5 = 55
S_SRD_DBG = 56
S_PC = 60
S_WOP = 62; S_W2P = 64
S_MP = 66; S_SC0 = 68; S_SC2 = 70; S_GE = 72; S_LE = 78
S_SRD_R = 84
S_SRD_L = 76
S_TSA = 88
S_ROLE = 3
def GE(h): return f"s[{S_GE+2*(h-1)}:{S_GE+2*(h-1)+1}]"
def LE(h): return f"s[{S_LE+2*h}:{S_LE+2*h+1}]"
XS = f"s[{S_SRD_X}:{S_SRD_X+3}]"; WSR = f"s[{S_SRD_WS}:{S_SRD_WS+3}]"; WW = f"s[{S_SRD_W}:{S_SRD_W+3}]"; DBG = f"s[{S_SRD_DBG}:{S_SRD_DBG+3}]"

SX = 18432
def SW(role): return 18432 if role == 'Q' else 15360
def XBASE(p, role): return p.NW * SW(role)
def RINGEND(p, role): return XBASE(p, role) + p.NX * SX
def RLB(p): return RINGEND(p, 'H')
def RLBUF(p, n):
    return RINGEND(p, 'H') + n*4096
def STAT(p, role): return RINGEND(p, role) + (24576 if role == 'H' else 0)
def CARE(p, role): return STAT(p, role) + 1536
def P2RING(p): return p.NS2 * p.SLOT
def EXB(p): return P2RING(p)
def RLADDR(p, role, n):
    if role == 'H': return RLB(p) + n*4096
    if n < p.rlNE: return FLG(p, 'Q') + 256 + n*4096
    return XBASE(p, 'Q') + 2*SX + (n - p.rlNE)*4096
OFFR = [0, 8, 16, 24, 32, 40, 47]
FL2_OFF = (25 << 20) + 131072
S_SLOTX = 50
S_OUTP = 84
S_RT2 = 86; S_CT2 = 87
S_NPRE = 44
def FLG(p, role): return CARE(p, role) + 1280

def mask64(a, s, val):
    a(f"s_mov_b32 s{s}, {val & 0xffffffff:#x}")
    a(f"s_mov_b32 s{s+1}, {(val >> 32) & 0xffffffff:#x}")

def stamp(a, p, idx):
    if p.stamps:
        if idx == 0: a("s_memrealtime s[74:75]\ns_waitcnt lgkmcnt(0)\ns_mov_b32 s102, s74".replace("s102", "s1"))
        a(f"s_memtime s[{S_TSA+2*idx}:{S_TSA+2*idx+1}]")
def write_stamps(a, p, n, kernel):
    if not p.stamps: return
    a("s_waitcnt vmcnt(0)\ns_memrealtime s[74:75]\ns_waitcnt lgkmcnt(0)")
    a(f"""s_lshl_b32 s{S_T1}, s2, 3
    s_add_u32 s{S_T1}, s{S_T1}, s{S_WAVE}
    s_lshl_b32 s{S_T1}, s{S_T1}, 6
    s_add_u32 s{S_T1}, s{S_T1}, {TS_OFF + kernel*(1<<20)}
    v_mov_b32 v12, 0""")
    for i in range(n):
        a(f"v_mov_b32 v{8+(i&3)}, s{S_TSA+2*i}")
        if (i & 3) == 3 or i == n-1:
            a(f"buffer_store_dwordx4 v[8:11], v12, {WSR}, s{S_T1} offen offset:{(i//4)*16}")
            a("s_nop 1")
    a(f"""v_mov_b32 v8, s1
    v_mov_b32 v9, s74
    buffer_store_dwordx2 v[8:9], v12, {WSR}, s{S_T1} offen offset:32
    s_waitcnt vmcnt(0)""")

def srd(a, s, lo, hi, size):
    a(f"""s_mov_b32 s{s}, s{lo}
    s_and_b32 s{s+1}, s{hi}, 0xffff
    s_mov_b32 s{s+2}, {size}
    s_mov_b32 s{s+3}, 0x20000""")

S_RAW = 41
def WL(p): return p.windows if p.windows else [p.WD]*(10//p.WD) + ([10 % p.WD] if 10 % p.WD else [])
S_DT = 72
def k1_entry(a, p):
    a(f"""s_getpc_b64 s[{S_PC}:{S_PC+1}]
    s_cmp_ge_u32 s2, 256
    s_cbranch_scc1 L1_exit
    s_load_dwordx4 s[4:7], s[0:1], 0
    s_load_dwordx2 s[{S_WOP}:{S_WOP+1}], s[0:1], 16
    s_load_dwordx4 s[{S_W1P}:{S_W1P+3}], s[0:1], 32
    s_load_dwordx4 s[68:71], s[0:1], 56
    s_load_dwordx2 s[{S_OUTP}:{S_OUTP+1}], s[0:1], 48
    v_lshrrev_b32 v1, 6, v0
    v_and_b32 v0, 63, v0
    s_and_b32 s{S_T0}, s2, 7
    s_lshr_b32 s{S_LI}, s2, 3
    v_readfirstlane_b32 s{S_WAVE}, v1
    s_lshr_b32 s{S_ROLE}, s{S_LI}, 4
    s_xor_b32 s{S_ROLE}, s{S_ROLE}, 1
    s_bfe_u32 s{S_RT2}, s{S_LI}, 0x30000          ; rt_l (0..7)
    s_bfe_u32 s{S_T1}, s{S_LI}, 0x10003           ; bit3
    s_lshl_b32 s{S_CT2}, s{S_T1}, 1
    s_xor_b32 s{S_T2}, s{S_RT2}, s{S_ROLE}
    s_and_b32 s{S_T2}, s{S_T2}, 1
    s_add_u32 s{S_CT2}, s{S_CT2}, s{S_T2}
    s_lshr_b32 s{S_T2}, s{S_T0}, 1
    s_lshl_b32 s{S_T2}, s{S_T2}, 3
    s_add_u32 s{S_RT2}, s{S_RT2}, s{S_T2}
    s_and_b32 s{S_T2}, s{S_T0}, 1
    s_lshl_b32 s{S_T2}, s{S_T2}, 2
    s_add_u32 s{S_CT2}, s{S_CT2}, s{S_T2}
    s_and_b32 s{S_TT}, s{S_T0}, 1
    s_lshr_b32 s{S_CC}, s{S_T0}, 1
    s_bfe_u32 s{S_RT}, s{S_LI}, 0x30000
    s_lshl_b32 s{S_T0}, s{S_CC}, 1
    s_add_u32 s{S_COL}, s{S_T1}, s{S_T0}
    s_lshl_b32 s{S_IDX}, s{S_ROLE}, 3
    s_add_u32 s{S_IDX}, s{S_IDX}, s{S_COL}
    s_lshl_b32 s{S_T2}, s{S_ROLE}, 1
    s_add_u32 s{S_T2}, s{S_T2}, s{S_T1}
    s_lshl_b32 s{S_T2}, s{S_T2}, 2
    s_lshr_b32 s{S_T2}, {sum(v << (4*i) for i, v in enumerate(p.rotC))}, s{S_T2}
    s_and_b32 s{S_T2}, s{S_T2}, 15
    s_add_u32 s{S_D0}, s{S_RT}, s{S_T2}
    s_mov_b32 s{S_RAW}, s{S_D0}
    s_mul_i32 s{S_T2}, s{S_D0}, {(65536 + WL(p)[0] - 1)//WL(p)[0]}
    s_lshr_b32 s{S_T2}, s{S_T2}, 16
    s_mul_i32 s{S_T2}, s{S_T2}, {WL(p)[0]}
    s_sub_u32 s{S_D0}, s{S_D0}, s{S_T2}
    s_lshl_b32 s{S_T2}, s{S_TT}, 3
    s_add_u32 s{S_RT}, s{S_RT}, s{S_T2}
    s_and_b32 s{S_T0}, s{S_COL}, 3
    s_lshl_b32 s{S_T0}, s{S_T0}, 2
    s_lshr_b32 s{S_THETA}, 0x2a6a, s{S_T0}
    s_and_b32 s{S_THETA}, s{S_THETA}, 15
    """)
    for wd in WL(p):
        for v in range(16): assert (v * ((65536 + wd - 1)//wd)) >> 16 == v // wd
    if not p.rot: a(f"s_mov_b32 s{S_D0}, 0")
    a(f"""s_cmp_ge_u32 s{S_WAVE}, 7
    s_cbranch_scc1 L_util
    s_cmp_ge_u32 s{S_WAVE}, 4
    s_cbranch_scc1 L_prod
    s_cmp_eq_u32 s{S_ROLE}, 0
    s_cbranch_scc0 L_cH
    s_branch L_cQ
    """)

def kwait(a, p, need):
    a("s_waitcnt lgkmcnt(0)")
    if 'x' in need: srd(a, S_SRD_X, 4, 5, 2048*1280)
    if 'ws' in need: srd(a, S_SRD_WS, 70, 71, 1 << 28)
    if 'dbg' in need: srd(a, S_SRD_DBG, 68, 69, 256)
    if 'w' in need:
        a(f"""s_cmp_eq_u32 s{S_ROLE}, 0
        s_cselect_b32 s{S_SRD_W}, s6, s{S_W1P}
        s_cselect_b32 s{S_SRD_W+1}, s7, s{S_W1P+1}
        s_mov_b32 s{S_T0}, {640*3456}
        s_cselect_b32 s{S_SRD_W+2}, {640*3840}, s{S_T0}
        s_and_b32 s{S_SRD_W+1}, s{S_SRD_W+1}, 0xffff
        s_mov_b32 s{S_SRD_W+3}, 0x20000""")
    if 'w2' in need:
        a(f"s_mov_b32 s{S_W2P}, s22\ns_mov_b32 s{S_W2P+1}, s23")

class R:
    VW = 1; VXA = 6; VXB = 7
    ACC = 16; HALO = 136; WF = 152; XF = 192
    ST = 232

def halo_frags(role, w):
    if role == 'Q':
        l = [w, 5 + w, 10 + w]
        if w < 3: l.append(4 + 5*w)
        return {f: n for n, f in enumerate(l)}
    return {f: (f - w)//4 for f in range(14) if f % 4 == w}

def consumer_setup(a, p, role):
    qkv = role == 'Q'
    pitch = 576 if qkv else 448
    XB = XBASE(p, role)
    a(f"""v_lshrrev_b32 v2, 4, v0          ; g
    v_bfe_u32 v3, v0, 2, 2            ; r
    v_and_b32 v4, 3, v0               ; c
    v_and_b32 v5, 1, v2               ; f
    v_lshl_add_u32 v6, v2, 3, v3      ; row = 8g + r
    v_mul_u32_u24 v6, {pitch}, v6
    v_lshl_add_u32 v14, v4, 3, v6
    v_lshlrev_b32 v15, 1, v5          ; 2f
    v_and_b32 v3, 15, v0              ; j
    v_lshrrev_b32 v4, 1, v3
    v_xor_b32 v4, v4, v2
    v_lshlrev_b32 v4, 4, v4
    v_lshl_add_u32 v4, v3, 7, v4
    s_lshl_b32 s{S_T0}, s{S_WAVE}, 12           ; w*2 blocks*2048
    s_add_u32 s{S_T0}, s{S_T0}, {XB + (2048 if qkv else 0)}
    v_add_u32 v{R.VXA}, s{S_T0}, v4
    v_xor_b32 v{R.VXB}, 64, v{R.VXA}
    v_add_u32 v8, {XB}, v4
    v_xor_b32 v9, 64, v8
    v_cmp_eq_u32 vcc, 0, v3
    s_not_b64 s[{S_MASK}:{S_MASK+1}], vcc
    """)
    if qkv:
        for st in range(2):
            for q in range(4): a(f"v_mov_b32 v{R.XF + st*12 + 8 + q}, 0x3f803f80")
        for b in range(5):
            a(f"""s_cmp_ge_u32 {2*b}, s{S_THETA}
            s_cselect_b32 s{S_T0}, {2*b+2}, {2*b}
            v_xor_b32 v13, s{S_T0}, v15
            v_lshl_add_u32 v{R.VW+b}, v13, 4, v14""")
    else:
        a(f"v_mov_b32 v13, 0x3f803f80")
        for q in range(4): a(f"v_cndmask_b32 v{R.XF + 8 + q}, 0, v13, vcc")
        a(f"""v_lshl_add_u32 v{R.VW}, v15, 4, v14
        v_lshlrev_b32 v13, 4, v15
        v_sub_u32 v{R.VW+1}, v14, v13""")
    nacc = 120 if qkv else 112
    for r in range(R.ACC, R.ACC + nacc): a(f"v_mov_b32 v{r}, 0")
    for r in range(R.HALO, R.HALO + 16): a(f"v_mov_b32 v{r}, 0")
    a(f"""s_mov_b32 s{S_WSLOT}, 0
    s_mov_b32 s{S_XSLOT}, 0
    s_mov_b32 s{S_SLOTC}, {SW(role)}
    s_mov_b32 s{S_SLOTX}, {SX}
    s_mov_b32 s{S_NEGW}, {-(p.NW-1)*SW(role) & 0xffffffff}
    s_mov_b32 s{S_NEGX}, {-(p.NX-1)*SX & 0xffffffff}
    s_mov_b32 s{S_CNT}, 0""")

def consumer_loop(a, p, role, w):
    qkv = role == 'Q'
    NB = 15 if qkv else 14
    NF = 10 if qkv else 7
    D = p.D
    pitch = 576 if qkv else 448
    second = 4 * pitch
    lab = f"L_c{role}{w}"
    a.label(lab)
    VHA, VHB = 8, 9
    def waddr(f):
        if qkv:
            part, b = divmod(f, 5)
            return R.VW + b, part * 192
        return R.VW + (f & 1), f * 32
    def rw(f, gidx, half):
        va, off = waddr(f)
        dst = R.WF + 4 * (gidx % NF) + 2*half
        return f"ds_read_b64_tr_b16 v[{dst}:{dst+1}], v{va} offset:{off + half*second}"
    def rx(which, st, hsel):
        dst = R.XF + st*12 + 4*which
        if which < 2:
            return [f"ds_read_b128 v[{dst}:{dst+3}], v{R.VXB if hsel else R.VXA} offset:{which*2048}"]
        return [f"s_mov_b64 exec, s[{S_MASK}:{S_MASK+1}]", f"ds_read_b128 v[{dst}:{dst+3}], v{VHB if hsel else VHA} offset:0", "s_mov_b64 exec, -1"]
    nx = 3 if qkv else 2
    halo_idx = halo_frags(role, w)
    def mfma_list(f, gidx, st):
        res = []
        wf = R.WF + 4 * (gidx % NF)
        W = f"v[{wf}:{wf+3}]"
        part, b = divmod(f, 5) if qkv else (0, f)
        for t in range(2):
            xf = R.XF + st*12 + 4*t
            X = f"v[{xf}:{xf+3}]"
            acc = R.ACC + part*40 + 8*b + 4*t
            A = f"v[{acc}:{acc+3}]"
            if part == 2: res.append(f"v_mfma_f32_16x16x32_bf16 {A}, {X}, {W}, {A}")
            else: res.append(f"v_mfma_f32_16x16x32_bf16 {A}, {W}, {X}, {A}")
        if f in halo_idx:
            xf = R.XF + (st*12 if qkv else 0) + 8
            X = f"v[{xf}:{xf+3}]"
            acc = R.HALO + 4*halo_idx[f]
            A = f"v[{acc}:{acc+3}]"
            if qkv and part == 2: res.append(f"v_mfma_f32_16x16x32_bf16 {A}, {X}, {W}, {A}")
            else: res.append(f"v_mfma_f32_16x16x32_bf16 {A}, {W}, {X}, {A}")
        return res
    trk = LgkmTracker()
    def emit(ins, tag=None):
        a(ins)
        if ins.startswith("ds_read"): trk.issue(tag)
    for which in range(nx):
        for ins in rx(which, 0, 0): emit(ins, ('x', 0, which))
    for f in range(D):
        emit(rw(f, f, 0), ('w', 0, f)); emit(rw(f, f, 1), ('w', 0, f))
    loop = f"{lab}_loop"
    a.label(loop)
    start_q = list(trk.q)
    nwa = 5 if qkv else 2
    lastuse = {}
    for f in range(NB):
        va, off = waddr(f); lastuse[va] = f - D
    lim = NB - 1 - D - 1
    for st in range(2):
        items = []
        items.append([0, 3, [f"s_add_u32 s{S_WSLOT}, s{S_WSLOT}, 1"], None])
        items.append([0, 4, [f"s_cmp_eq_u32 s{S_WSLOT}, {p.NW}", f"s_cselect_b32 s{S_WDELTA}, s{S_NEGW}, s{S_SLOTC}", f"s_cselect_b32 s{S_WSLOT}, 0, s{S_WSLOT}"], None])
        xitems = []
        if st == 1:
            xitems.append([0, 1, [f"s_add_u32 s{S_XSLOT}, s{S_XSLOT}, 1", f"s_cmp_eq_u32 s{S_XSLOT}, {p.NX}", f"s_cselect_b32 s{S_XDELTA}, s{S_NEGX}, s{S_SLOTX}", f"s_cselect_b32 s{S_XSLOT}, 0, s{S_XSLOT}"], None])
            xa = [f"v_add_u32 v{R.VXA}, s{S_XDELTA}, v{R.VXA}", f"v_add_u32 v{R.VXB}, s{S_XDELTA}, v{R.VXB}"]
            if qkv: xa += [f"v_add_u32 v{VHA}, s{S_XDELTA}, v{VHA}", f"v_add_u32 v{VHB}, s{S_XDELTA}, v{VHB}"]
            for x in xa: xitems.append([0, lim, [x], None])
        for which in range(nx):
            tag = ('x', 1, which) if st == 0 else ('x', 2, which)
            xitems.append([0, lim, rx(which, 1 - st, 1 if st == 0 else 0), tag])
        witems = []
        for b in range(nwa):
            witems.append([lastuse[R.VW + b] + 1, NB - D + (b if qkv else b) - 1 if True else 0, [f"v_add_u32 v{R.VW+b}, s{S_WDELTA}, v{R.VW+b}"], None])
        queue = []
        if st == 1:
            for it in xitems[:1]: queue += [(it[0], x, it[3]) for x in it[2]]
        for it in items: queue += [(it[0], x, it[3]) for x in it[2]]
        rest = xitems[1:] if st == 1 else xitems
        for it in rest: queue += [(it[0], x, it[3]) for x in it[2]]
        wq = [(it[0], it[2][0]) for it in witems]
        for f in range(NB):
            g = st*NB + f
            fn = f + D
            if fn < NB: t1 = ('w', st, fn); fr = fn
            else: t1 = ('w', (st+1) % 2 + (2 if st == 1 else 0), fn - NB); fr = fn - NB
            ms = mfma_list(f, g, st)
            va, _ = waddr(fr)
            if fn >= NB:
                for e in list(wq):
                    if f"v{va}," in e[1].split()[1] + ",":
                        a(e[1]); wq.remove(e)
            need = {('w', st, f)}
            if p.pairwait:
                if f % 2 == 0 and f + 1 < NB: need |= {('w', st, f + 1)}
            if f == 0: need |= {('x', st, q) for q in range(nx)}
            trk.wait_for(a, need)
            free = []
            for k, m in enumerate(ms):
                a(m)
                slots = 2
                if k == 0: emit(rw(fr, g + D, 0), t1); slots -= 1
                if k == 1: emit(rw(fr, g + D, 1), t1); slots -= 1
                last = k == len(ms) - 1
                if last and not (p.pairwait and f % 2 == 0): slots -= 1
                while slots > 0:
                    cand = [e for e in wq if e[0] <= f]
                    if cand and not any('WDELTA' in q[1] or f"s{S_WDELTA}," in q[1] for q in queue if q[1].startswith('s_cselect_b32')):
                        e = cand[0]; a(e[1]); wq.remove(e); slots -= 1; continue
                    if queue and queue[0][0] <= f:
                        e = queue.pop(0)
                        emit(e[1], e[2]); slots -= 1
                        while e[1].startswith("s_mov_b64 exec, s[") or (queue and queue[0][1] == "s_mov_b64 exec, -1"):
                            e = queue.pop(0); emit(e[1], e[2]); slots -= 1
                            if e[1] == "s_mov_b64 exec, -1": break
                        continue
                    break
            if f == lim:
                while queue:
                    e = queue.pop(0); emit(e[1], e[2])
        assert not queue and not wq, (queue, wq)
        if p.dbar and st == 0:
            lb = a.newlabel("L_mid")
            a(f"s_cmp_eq_u32 s{S_CNT}, 0\ns_cbranch_scc0 {lb}\ns_barrier")
            a.label(lb)
        else:
            a("s_barrier")
    def norm(t): return (t[0], t[1] - 2, t[2]) if t[1] >= 2 else t
    endq = [norm(t) for t in trk.q]
    assert endq == start_q[len(start_q)-len(endq):], (endq, start_q)
    a(f"""s_add_u32 s{S_CNT}, s{S_CNT}, 1
    s_cmp_lt_u32 s{S_CNT}, 10
    s_cbranch_scc1 {loop}
    s_branch L_epi{role}""")

def pk_corr(acc, cpair, mreg, mode):
    if mode == 'c':
        base = mreg & ~1; hi = mreg & 1
        return f"v_pk_fma_f32 v[{acc}:{acc+1}], v[{cpair}:{cpair+1}], v[{base}:{base+1}], v[{acc}:{acc+1}] op_sel:[0,{hi},0] op_sel_hi:[1,{hi},1] neg_lo:[0,1,0] neg_hi:[0,1,0]"
    base = cpair & ~1; hi = cpair & 1
    return f"v_pk_fma_f32 v[{acc}:{acc+1}], v[{mreg}:{mreg+1}], v[{base}:{base+1}], v[{acc}:{acc+1}] op_sel:[0,{hi},0] op_sel_hi:[1,{hi},1] neg_lo:[1,0,0] neg_hi:[1,0,0]"

def dry_skip(a, p):
    lb = a.newlabel("L_dsk")
    a(f"s_cmp_eq_u32 s{S_DRY}, 1\ns_cbranch_scc1 {lb}")
    return lb

def zipl(*lists):
    res = []
    n = max(len(l) for l in lists)
    for i in range(n):
        for l in lists:
            if i < len(l): res.append(l[i])
    return res

class Seg:
    def __init__(self): self.l = []; self.trk = LgkmTracker()
    def __call__(self, s):
        for x in s.split("\n"):
            x = x.strip()
            if x and not x.startswith(';'): self.l.append(x)
    def ds(self, s, tag):
        self(s); self.trk.issue(tag)
    def wait(self, tags): self.trk.wait_for(self, tags)
    def waitall(self):
        self("s_waitcnt lgkmcnt(0)"); self.trk.q = []
    def flush(self, a, p, name):
        if p.nosched: out, t = self.l, 0
        else: out, t = sched.schedule(self.l)
        for x in out: a(x)
        self.l = []

def epilogue_qkv(a, p):
    S = R.ST
    Q, K, V = R.ACC, R.ACC + 40, R.ACC + 80
    KPP, KP0, KP1, VP, QP = 152, 162, 172, 182, 212
    ST_ = STAT(p, 'Q'); CB = CARE(p, 'Q')
    EX_LDS = 0
    H0 = R.HALO
    a.label("L_epiQ")
    stamp(a, p, 2)
    g = Seg()
    AM_W2 = 72
    g(f"""v_lshrrev_b32 v2, 4, v0
    v_and_b32 v3, 15, v0
    v_lshlrev_b32 v4, 4, v2
    v_lshlrev_b32 v5, 2, v3
    v_lshlrev_b32 v6, 3, v0
    v_add_u32 v6, {EXB(p)}, v6
    s_lshl_b32 s{S_T0}, s{S_WAVE}, 7
    s_add_u32 s{S_T0}, s{S_T0}, {ST_ + 64}
    v_add_u32 v14, s{S_T0}, v5
    v_add_u32 v15, s{S_T0}, v4
    v_add_u32 v10, {ST_}, v5
    v_add_u32 v11, {ST_}, v4
    v_add_u32 v4, {CB}, v4
    v_add_u32 v5, {CB}, v5
    s_lshl_b32 s{S_T1}, s{S_WAVE}, 6
    v_add_u32 v12, s{S_T1}, v4
    v_add_u32 v13, s{S_T1}, v5
    s_mul_i32 s{S_T2}, s{S_WAVE}, 320
    v_add_u32 v8, s{S_T2}, v4
    s_not_b64 s[{S_MASK}:{S_MASK+1}], s[{S_MASK}:{S_MASK+1}]
    s_mov_b32 s{S_SC0}, 0xfff0ffff
    s_mov_b32 s{S_SC0+1}, 0xf000ff00
    s_mov_b32 s{S_SC2}, 0xffc0fffc
    s_mov_b32 s{S_SC2+1}, 0xc000fc00
    s_cmp_lt_u32 s{S_WAVE}, 2
    s_cselect_b64 s[74:75], s[{S_MASK}:{S_MASK+1}], 0
    s_cmp_eq_u32 s{S_WAVE}, 2
    s_cselect_b64 s[{AM_W2}:{AM_W2+1}], -1, 0
    s_and_b64 s[76:77], s[{AM_W2}:{AM_W2+1}], 0xffff
    s_waitcnt lgkmcnt(0)
    s_mov_b64 exec, s[{S_MASK}:{S_MASK+1}]
    ds_write_b128 v12, v[{H0}:{H0+3}] offset:0
    ds_write_b128 v12, v[{H0+4}:{H0+7}] offset:320
    s_mov_b64 exec, s[74:75]
    ds_write_b128 v8, v[{H0+12}:{H0+15}] offset:256
    s_mov_b64 exec, 0xffff
    ds_write_b32 v13, v{H0+8} offset:640
    s_mov_b64 exec, s[76:77]
    ds_write_b32 v5, v{H0+12} offset:896
    s_mov_b64 exec, -1
    v_and_b32 v8, 1, v0
    v_lshl_add_u32 v8, v8, 2, v15
    v_cndmask_b32 v9, 64, 0, s[{S_SC0}:{S_SC0+1}]
    v_sub_u32 v9, v8, v9
    v_cndmask_b32 v7, 64, 0, s[{S_SC2}:{S_SC2+1}]
    v_sub_u32 v7, v8, v7
    s_waitcnt lgkmcnt(0)""")
    for x in g.l: a(x)
    g.l = []
    a("s_barrier")
    stamp(a, p, 3)
    CK, CV, CHK, CHV, CQ = 192, 152, 158, 157, 212
    g.ds(f"ds_read_b32 v{S}, v14", 'g1'); g.ds(f"ds_read_b32 v{S+1}, v14 offset:64", 'g1')
    for b in range(5): g.ds(f"ds_read_b128 v[{CK+4*b}:{CK+4*b+3}], v4 offset:{(80 + 16*b)*4}", 'g1')
    g.ds(f"ds_read_b128 v[{S+4}:{S+7}], v15", 'g2'); g.ds(f"ds_read_b128 v[{S+8}:{S+11}], v15 offset:64", 'g2')
    for b in range(5): g.ds(f"ds_read_b32 v{CV+b}, v5 offset:{(160 + 16*b)*4}", 'g2')
    g.wait({'g1'})
    g.ds(f"ds_read_b32 v{S+16}, v10", 'g3'); g.ds(f"ds_read_b128 v[{S+18}:{S+21}], v11", 'g3')
    g.ds(f"ds_read_b128 v[{CHK}:{CHK+3}], v12 offset:320", 'g3'); g.ds(f"ds_read_b32 v{CHV}, v13 offset:640", 'g3')
    for t in (1, 0):
        for b in range(5):
            g(pk_corr(K+8*b+4*t, CK+4*b, S+t, 'c')); g(pk_corr(K+8*b+4*t+2, CK+4*b+2, S+t, 'c'))
    g.wait({'g2'})
    for b in range(5): g.ds(f"ds_read_b128 v[{CQ+4*b}:{CQ+4*b+3}], v4 offset:{(16*b)*4}", 'g4')
    for t in (1, 0):
        for b in range(5):
            g(pk_corr(V+8*b+4*t, CV+b, S+4+4*t, 'm')); g(pk_corr(V+8*b+4*t+2, CV+b, S+4+4*t+2, 'm'))
    g.wait({'g3'})
    g.ds(f"ds_read_b32 v{S+2}, v14 offset:576", 'g5'); g.ds(f"ds_read_b32 v{S+3}, v14 offset:640", 'g5')
    g.ds(f"ds_read_b32 v{S+12}, v9 offset:576", 'g5'); g.ds(f"ds_read_b32 v{S+13}, v9 offset:{576+64}", 'g5')
    g.ds(f"ds_read_b32 v{S+14}, v7 offset:{576+8}", 'g5'); g.ds(f"ds_read_b32 v{S+15}, v7 offset:{576+64+8}", 'g5')
    HK, HV, HX = H0+4, H0+8, H0+12
    g(pk_corr(HK, CHK, S+16, 'c')); g(pk_corr(HK+2, CHK+2, S+16, 'c'))
    g(pk_corr(HV, CHV, S+18, 'm')); g(pk_corr(HV+2, CHV, S+20, 'm'))
    W2 = f"s[{AM_W2}:{AM_W2+1}]"
    PX, SX = 2, 1
    for r in range(4): g(f"v_cndmask_b32 v{H0+r}, v{CK+16+r}, v{S+18+r}, {W2}")
    g(f"v_cndmask_b32 v2, v{S+16}, v{CV+4}, {W2}")
    g(f"v_pk_fma_f32 v[{HX}:{HX+1}], v[{H0}:{H0+1}], v[2:3], v[{HX}:{HX+1}] op_sel:[0,0,0] op_sel_hi:[1,0,1] neg_lo:[1,0,0] neg_hi:[1,0,0]")
    g(f"v_pk_fma_f32 v[{HX+2}:{HX+3}], v[{H0+2}:{H0+3}], v[2:3], v[{HX+2}:{HX+3}] op_sel:[0,0,0] op_sel_hi:[1,0,1] neg_lo:[1,0,0] neg_hi:[1,0,0]")
    def packK(t):
        d0 = KP0 if t == 0 else KP1
        for b in range(5):
            g(f"v_cvt_pk_bf16_f32 v{d0+2*b}, v{K+8*b+4*t}, v{K+8*b+4*t+1}"); g(f"v_cvt_pk_bf16_f32 v{d0+2*b+1}, v{K+8*b+4*t+2}, v{K+8*b+4*t+3}")
    def packV(t):
        for b in range(5):
            g(f"v_cvt_pk_bf16_f32 v{VP+6*b+2+2*t}, v{V+8*b+4*t}, v{V+8*b+4*t+1}"); g(f"v_cvt_pk_bf16_f32 v{VP+6*b+3+2*t}, v{V+8*b+4*t+2}, v{V+8*b+4*t+3}")
    packK(1); packV(1)
    g(f"""v_cvt_pk_bf16_f32 v60, v{HK}, v{HK+1}
    v_cvt_pk_bf16_f32 v61, v{HK+2}, v{HK+3}
    v_cvt_pk_bf16_f32 v62, v{HV}, v{HV+1}
    v_cvt_pk_bf16_f32 v63, v{HV+2}, v{HV+3}
    v_cvt_pk_bf16_f32 v68, v{HX}, v{HX+1}
    v_cvt_pk_bf16_f32 v69, v{HX+2}, v{HX+3}
    s_lshl_b32 s{S_T0}, s{S_WAVE}, 9
    v_add_u32 v12, s{S_T0}, v6
    s_mul_i32 s{S_T1}, s{S_WAVE}, 5120
    v_add_u32 v13, s{S_T1}, v6
    s_cmp_eq_u32 s{S_WAVE}, 1
    s_movk_i32 s{S_T2}, {5*5120}
    s_cselect_b32 s{S_T2}, {4*512}, s{S_T2}
    s_cmp_eq_u32 s{S_WAVE}, 2
    s_cselect_b32 s{S_T2}, {9*512}, s{S_T2}
    v_add_u32 v6, s{S_T2}, v6""")
    g.ds(f"ds_write_b64 v12, v[60:61] offset:{EX_LDS}", 'x'); g.ds(f"ds_write_b64 v12, v[62:63] offset:{EX_LDS + 5*512}", 'x')
    g.ds(f"ds_write_b64 v6, v[68:69] offset:{EX_LDS}", 'x')
    for b in range(5):
        g.ds(f"ds_write_b64 v13, v[{KP1+2*b}:{KP1+2*b+1}] offset:{EX_LDS + 5120 + b*512}", 'x')
        g.ds(f"ds_write_b64 v13, v[{VP+6*b+4}:{VP+6*b+5}] offset:{EX_LDS + 5120 + (5+b)*512}", 'x')
    packK(0); packV(0)
    g.wait({'g4'}) if False else None
    g.trk.wait_for(g, {'g4', 'g5'})
    for b in range(5):
        for t in range(2):
            g(pk_corr(Q+8*b+4*t, CQ+4*b, S+t, 'c')); g(pk_corr(Q+8*b+4*t+2, CQ+4*b+2, S+t, 'c'))
    for b in range(5):
        for t in range(2):
            acc = Q + 8*b + 4*t
            g(f"v_cvt_pk_bf16_f32 v{QP+10*t+2*b}, v{acc}, v{acc+1}"); g(f"v_cvt_pk_bf16_f32 v{QP+10*t+2*b+1}, v{acc+2}, v{acc+3}")
    g.waitall()
    g.flush(a, p, "E2")
    stamp(a, p, 4)
    a("s_barrier")
    for b in range(5):
        g.ds(f"ds_read_b64 v[{KPP+2*b}:{KPP+2*b+1}], v13 offset:{EX_LDS + b*512}", 'pk')
    for b in range(5):
        g.ds(f"ds_read_b64 v[{VP+6*b}:{VP+6*b+1}], v13 offset:{EX_LDS + (5+b)*512}", 'pv')
    def m64(sreg, val):
        g(f"s_mov_b32 s{sreg}, {val & 0xffffffff:#x}\ns_mov_b32 s{sreg+1}, {(val >> 32) & 0xffffffff:#x}")
    m64(S_MP, 0xAAAAAAAAAAAAAAAA)
    for h in (1, 2, 3): m64(S_GE + 2*(h-1), (~((1 << (16*h)) - 1)) & (2**64-1))
    for h in (0, 1, 2): m64(S_LE + 2*h, (1 << (16*(h+1))) - 1)
    SP0, SC0_, SP2, SC2_ = 8, 9, 10, 11
    F = 136
    BB = 140
    RK = 142
    MPs = f"s[{S_MP}:{S_MP+1}]"; SC0s = f"s[{S_SC0}:{S_SC0+1}]"; SC2s = f"s[{S_SC2}:{S_SC2+1}]"
    g(f"""v_mov_b32 v146, 0x0c0c0100
    v_mov_b32 v147, 0x01000c0c
    v_cndmask_b32 v146, v146, v147, {MPs}
    v_mov_b32 v147, 0x0c0c0302
    v_mov_b32 v148, 0x03020c0c
    v_cndmask_b32 v147, v147, v148, {MPs}
    v_mov_b32 v148, 0x0c0c0c0c
    v_cndmask_b32 v{SC0_}, v148, v146, {SC0s}
    v_cndmask_b32 v{SP0}, v146, v148, {SC0s}
    v_cndmask_b32 v{SC2_}, v148, v147, {SC2s}
    v_cndmask_b32 v{SP2}, v147, v148, {SC2s}
    s_or_b32 s{S_T0}, s{S_RT}, s{S_WAVE}
    s_cmp_eq_u32 s{S_T0}, 0
    s_cselect_b32 s{S_T0}, {f2u(-1e30):#x}, 0
    v_mov_b32 v149, s{S_T0}
    v_cndmask_b32 v{BB}, v149, 0, {SC0s}
    v_cndmask_b32 v{BB+1}, v149, 0, {SC2s}
    s_lshl_b32 s{S_T0}, s{S_RT}, 1
    s_lshr_b32 s{S_T1}, s{S_WAVE}, 1
    s_add_u32 s{S_T0}, s{S_T0}, s{S_T1}
    s_mul_i32 s{S_T0}, s{S_T0}, 74
    s_mul_i32 s{S_T2}, s{S_COL}, 5
    s_lshr_b32 s{S_T2}, s{S_T2}, 1
    s_add_u32 s{S_T0}, s{S_T0}, s{S_T2}
    s_lshl_b32 s{S_T0}, s{S_T0}, 12
    s_and_b32 s{S_T1}, s{S_WAVE}, 1
    s_lshl_b32 s{S_T1}, s{S_T1}, 11
    s_add_u32 s{S_T5}, s{S_T0}, s{S_T1}
    v_lshlrev_b32 v7, 4, v0""")
    SCALE = (20 ** -0.5) * 1.4426950408889634
    for t in range(2):
        g(f"""v_mov_b32 v{RK+2*t}, v{S+12+t}
        v_mov_b32 v{RK+2*t+1}, v{S+14+t}
        v_mul_f32 v{F+2*t}, {f2u(SCALE):#x}, v{S+2+t}
        v_mul_f32 v{F+2*t+1}, v{F+2*t}, v{S+14+t}
        v_mul_f32 v{F+2*t}, v{F+2*t}, v{S+12+t}""")
    def T(t):
        return dict(QM=16+16*t, PP=16+16*t, SC=48+32*t, SP=64+32*t, Z=112+8*t, MX=128+4*t, OP=(142 if False else 150) if False else None)
    OPS = {0: 96 + 0, 1: 0}
    for t in range(2):
        x = T(t); QM = x['QM']
        for h in range(4):
            q = QP + 10*t + 2*h; d = QM + 4*h
            if h == 0: g(f"v_mov_b32 v{d}, v{q}\nv_mov_b32 v{d+1}, v{q+1}")
            else: g(f"v_cndmask_b32 v{d}, 0, v{q}, {GE(h)}\nv_cndmask_b32 v{d+1}, 0, v{q+1}, {GE(h)}")
            if h == 3: g(f"v_mov_b32 v{d+2}, v{q+2}\nv_mov_b32 v{d+3}, v{q+3}")
            else: g(f"v_cndmask_b32 v{d+2}, 0, v{q+2}, {LE(h)}\nv_cndmask_b32 v{d+3}, 0, v{q+3}, {LE(h)}")
    g.wait({'pk'})
    for t in (1, 0):
        x = T(t)
        Kc = KP0 if t == 0 else KP1
        Kp = KPP if t == 0 else KP0
        for h in range(4):
            g(f"v_mfma_f32_16x16x32_bf16 v[{x['SC']+4*h}:{x['SC']+4*h+3}], v[{Kc+2*h}:{Kc+2*h+3}], v[{x['QM']+4*h}:{x['QM']+4*h+3}], 0")
            g(f"v_mfma_f32_16x16x32_bf16 v[{x['SP']+4*h}:{x['SP']+4*h+3}], v[{Kp+2*h}:{Kp+2*h+3}], v[{x['QM']+4*h}:{x['QM']+4*h+3}], 0")
    def xreduce(op, b):
        g(f"""v_permlane32_swap_b32 v{b}, v{b+2}
        v_permlane32_swap_b32 v{b+1}, v{b+3}
        {op} v{b}, v{b}, v{b+2}
        {op} v{b+1}, v{b+1}, v{b+3}
        v_permlane16_swap_b32 v{b}, v{b+1}
        {op} v{b}, v{b}, v{b+1}""")
    def xbcast(b):
        g(f"""v_mov_b32 v{b+1}, v{b}
        v_permlane16_swap_b32 v{b}, v{b+1}
        v_mov_b32 v{b+2}, v{b}
        v_mov_b32 v{b+3}, v{b+1}
        v_permlane32_swap_b32 v{b}, v{b+2}
        v_permlane32_swap_b32 v{b+1}, v{b+3}""")
    for t in (1, 0):
        x = T(t); Z, MX, PP = x['Z'], x['MX'], x['PP']
        for h in range(4):
            c, pp = x['SC']+4*h, x['SP']+4*h
            z = Z + 2*h
            g(f"""v_cndmask_b32 v{c}, v{c}, v{c+1}, {MPs}
            v_cndmask_b32 v{c+2}, v{c+2}, v{c+3}, {MPs}
            v_cndmask_b32 v{pp}, v{pp}, v{pp+1}, {MPs}
            v_cndmask_b32 v{pp+2}, v{pp+2}, v{pp+3}, {MPs}
            v_cndmask_b32 v{z}, v{pp}, v{c}, {SC0s}
            v_cndmask_b32 v{z+1}, v{pp+2}, v{c+2}, {SC2s}""")
            if t == 0: g(f"v_pk_fma_f32 v[{z}:{z+1}], v[{z}:{z+1}], v[{F}:{F+1}], v[{BB}:{BB+1}]")
            else: g(f"v_pk_mul_f32 v[{z}:{z+1}], v[{z}:{z+1}], v[{F+2}:{F+3}]")
            g(f"v_max_f32 v{MX+h}, v{z}, v{z+1}")
        xreduce("v_max_f32", MX); xbcast(MX)
        for h in range(4):
            z = Z + 2*h; m = MX + h
            g(f"v_pk_add_f32 v[{z}:{z+1}], v[{z}:{z+1}], v[{m & ~1}:{(m & ~1)+1}] op_sel:[0,{m & 1}] op_sel_hi:[1,{m & 1}] neg_lo:[0,1] neg_hi:[0,1]")
            g(f"v_exp_f32 v{z}, v{z}\nv_exp_f32 v{z+1}, v{z+1}")
            g(f"v_add_f32 v{m}, v{z}, v{z+1}")
        xreduce("v_add_f32", MX)
        for h in range(4):
            z = Z + 2*h
            g(f"v_pk_mul_f32 v[{z}:{z+1}], v[{z}:{z+1}], v[{RK+2*t}:{RK+2*t+1}]")
        g(f"v_rcp_f32 v{MX}, v{MX}")
        xbcast(MX)
        for h in range(4):
            z = Z + 2*h; m = MX + h; d = PP + 4*h
            g(f"v_pk_mul_f32 v[{z}:{z+1}], v[{z}:{z+1}], v[{m & ~1}:{(m & ~1)+1}] op_sel:[0,{m & 1}] op_sel_hi:[1,{m & 1}]")
            g(f"v_cvt_pk_bf16_f32 v{z}, v{z}, v{z+1}")
            g(f"""v_perm_b32 v{d}, v{z}, v{z}, v{SP0}
            v_perm_b32 v{d+1}, v{z}, v{z}, v{SP2}
            v_perm_b32 v{d+2}, v{z}, v{z}, v{SC0_}
            v_perm_b32 v{d+3}, v{z}, v{z}, v{SC2_}""")
    g.wait({'pv'})
    OP = {0: 212, 1: 222}
    for t in (1, 0):
        x = T(t)
        for h in range(4):
            v1 = VP + 6*h + 2*t; v2 = VP + 6*(h+1) + 2*t
            g(f"v_mfma_f32_16x16x32_bf16 v[{x['SC']+4*h}:{x['SC']+4*h+3}], v[{v1}:{v1+3}], v[{x['PP']+4*h}:{x['PP']+4*h+3}], 0")
            g(f"v_mfma_f32_16x16x32_bf16 v[{x['SP']+4*h}:{x['SP']+4*h+3}], v[{v2}:{v2+3}], v[{x['PP']+4*h}:{x['PP']+4*h+3}], 0")
        OF, OS = x['SC'], x['SP']
        for b in range(5):
            if b == 0: src = OF
            elif b == 4: src = OS + 12
            else:
                src = OF + 4*b
                for q in range(4): g(f"v_cndmask_b32 v{src+q}, v{OS+4*(b-1)+q}, v{src+q}, {GE(b)}")
            g(f"v_cvt_pk_bf16_f32 v{OP[t]+2*b}, v{src}, v{src+1}")
            g(f"v_cvt_pk_bf16_f32 v{OP[t]+2*b+1}, v{src+2}, v{src+3}")
    g.flush(a, p, "E3")
    stamp(a, p, 5)
    if not p.latestore:
        o_stores(a, p)
    else:
        a(f"s_mov_b32 s{S_OST}, s{S_T5}")
    stamp(a, p, 6)
    a("s_branch L2_c")

S_OST = 83
def o_stores(a, p, sreg=None):
    OP = {0: 212, 1: 222}
    TM = {0: 232, 1: 236}
    sb = S_T5 if sreg is None else sreg
    le = a.newlabel("L_even"); ld = a.newlabel("L_done")
    def shared(t, r):
        x = TM[t]
        a(f"""v_mov_b32 v{x}, v{r}
        v_mov_b32 v{x+2}, v{r}
        v_mov_b32 v{x+1}, v{r+1}
        v_mov_b32 v{x+3}, v{r+1}
        v_permlane16_swap_b32 v{x}, v{x+2}
        v_permlane16_swap_b32 v{x+1}, v{x+3}""")
    a(f"s_bitcmp1_b32 s{S_COL}, 0\ns_cbranch_scc0 {le}")
    for t in range(2): shared(t, OP[t])
    for t in range(2):
        o = OP[t]; x = TM[t]
        a(f"""s_add_u32 s{S_T0}, s{sb}, {t*1024}
        s_mov_b32 exec_lo, 0xffff0000
        s_mov_b32 exec_hi, 0xffff0000
        buffer_store_dwordx4 v[{x}:{x+3}], v7, {WSR}, s{S_T0} offen {p.stflags}
        s_mov_b64 exec, -1
        s_add_u32 s{S_T0}, s{S_T0}, 4096
        buffer_store_dwordx4 v[{o+2}:{o+5}], v7, {WSR}, s{S_T0} offen {p.stflags}
        s_add_u32 s{S_T0}, s{S_T0}, 4096
        buffer_store_dwordx4 v[{o+6}:{o+9}], v7, {WSR}, s{S_T0} offen {p.stflags}""")
    a(f"s_branch {ld}")
    a.label(le)
    for t in range(2): shared(t, OP[t] + 8)
    for t in range(2):
        o = OP[t]; x = TM[t]
        a(f"""s_add_u32 s{S_T0}, s{sb}, {t*1024}
        buffer_store_dwordx4 v[{o}:{o+3}], v7, {WSR}, s{S_T0} offen {p.stflags}
        s_add_u32 s{S_T0}, s{S_T0}, 4096
        buffer_store_dwordx4 v[{o+4}:{o+7}], v7, {WSR}, s{S_T0} offen {p.stflags}
        s_add_u32 s{S_T0}, s{S_T0}, 4096
        s_mov_b32 exec_lo, 0x0000ffff
        s_mov_b32 exec_hi, 0x0000ffff
        buffer_store_dwordx4 v[{x}:{x+3}], v7, {WSR}, s{S_T0} offen {p.stflags}
        s_mov_b64 exec, -1""")
    a.label(ld)

def epilogue_h(a, p):
    S = R.ST
    ST_ = STAT(p, 'H'); CB = CARE(p, 'H')
    a.label("L_epiH")
    stamp(a, p, 2)
    a(f"""v_lshrrev_b32 v2, 4, v0
    v_and_b32 v3, 15, v0
    v_lshlrev_b32 v4, 4, v2
    v_lshlrev_b32 v5, 2, v3
    v_add_u32 v4, {CB}, v4
    s_lshl_b32 s{S_T0}, s{S_WAVE}, 6
    v_add_u32 v12, s{S_T0}, v4
    s_lshl_b32 s{S_T0}, s{S_WAVE}, 7
    s_add_u32 s{S_T0}, s{S_T0}, {ST_}
    v_add_u32 v14, s{S_T0}, v5
    s_not_b64 s[{S_MASK}:{S_MASK+1}], s[{S_MASK}:{S_MASK+1}]
    s_waitcnt lgkmcnt(0)
    s_mov_b64 exec, s[{S_MASK}:{S_MASK+1}]""")
    for n in range(4):
        h = R.HALO + 4*n
        a(f"ds_write_b128 v12, v[{h}:{h+3}] offset:{n*256}")
    a("s_mov_b64 exec, -1\ns_waitcnt lgkmcnt(0)\ns_barrier")
    stamp(a, p, 3)
    g = Seg()
    CR = 152
    for k in range(4): g.ds(f"ds_read_b32 v{S+k}, v14 offset:{[0, 64, 576, 640][k]}", 's')
    for b in range(7): g.ds(f"ds_read_b128 v[{CR+4*b}:{CR+4*b+3}], v4 offset:{16*b*4}", ('c', b))
    g(f"""s_lshl_b32 s{S_T0}, s{S_RT}, 1
    s_lshr_b32 s{S_T1}, s{S_WAVE}, 1
    s_add_u32 s{S_T0}, s{S_T0}, s{S_T1}
    s_mul_i32 s{S_T0}, s{S_T0}, 74
    s_mul_i32 s{S_T2}, s{S_COL}, {1 if p.staged else 7}
    s_add_u32 s{S_T0}, s{S_T0}, s{S_T2}
    s_add_u32 s{S_T0}, s{S_T0}, 20
    s_lshl_b32 s{S_T0}, s{S_T0}, 12
    s_and_b32 s{S_T1}, s{S_WAVE}, 1
    s_lshl_b32 s{S_T1}, s{S_T1}, 11
    s_add_u32 s{S_T5}, s{S_T0}, s{S_T1}
    s_cmp_eq_u32 s{S_COL}, 7
    s_cselect_b32 s{S_T3}, {OOB}, 0
    v_lshlrev_b32 v7, 4, v0
    v_mov_b32 v8, 0""")
    pre = list(g.l); preq = list(g.trk.q)
    def body(late):
        issued = 7
        stores = []
        for pr in range(7):
            g.wait({'s', ('c', 2*pr), ('c', 2*pr+1)})
            while issued < 14 and issued < 2*pr + 6:
                g.ds(f"ds_read_b128 v[{CR+4*issued}:{CR+4*issued+3}], v4 offset:{16*issued*4}", ('c', issued)); issued += 1
            for t in range(2):
                o = R.ACC + 8*(2*pr) + 4*t
                for bb in range(2):
                    b = 2*pr + bb
                    acc = R.ACC + 8*b + 4*t
                    c = CR + 4*b
                    hi = (S+2+t) & 1; base = (S+2+t) & ~1
                    g(pk_corr(acc, c, S+t, 'c')); g(pk_corr(acc+2, c+2, S+t, 'c'))
                    for q in (0, 2): g(f"v_pk_mul_f32 v[{acc+q}:{acc+q+1}], v[{acc+q}:{acc+q+1}], v[{base}:{base+1}] op_sel:[0,{hi}] op_sel_hi:[1,{hi}]")
                    g(f"v_cvt_pk_bf16_f32 v{o+2*bb}, v{acc}, v{acc+1}\nv_cvt_pk_bf16_f32 v{o+2*bb+1}, v{acc+2}, v{acc+3}")
                    g(f"v_pk_max_i16 v{o+2*bb}, v{o+2*bb}, v8\nv_pk_max_i16 v{o+2*bb+1}, v{o+2*bb+1}, v8")
            st = []
            if pr == 5: st.append(f"s_add_u32 s{S_T5}, s{S_T5}, s{S_T3}")
            for t in range(2):
                o = R.ACC + 8*(2*pr) + 4*t
                st.append(f"buffer_store_dwordx4 v[{o}:{o+3}], v7, {WSR}, s{S_T5} offen offset:{t*1024} {p.stflags}")
            step = ((OFFR[pr+1] - OFFR[pr]) if pr < 6 else 1) * 4096 if p.staged else 4096
            st.append(f"s_add_u32 s{S_T5}, s{S_T5}, {step}")
            if late: stores += st
            else:
                for x in st: g(x)
        return stores
    if p.hprio:
        ll = a.newlabel("L_hlate"); le = a.newlabel("L_hend")
        a(f"s_cmp_ge_u32 s{S_COL}, {p.hprio}\ns_cbranch_scc1 {ll}")
        body(False)
        g.flush(a, p, "EH early")
        a(f"s_branch {le}")
        a.label(ll)
        g.l = list(pre); g.trk.q = list(preq)
        stores = body(True)
        g.flush(a, p, "EH late")
        if p.hdelay: a(f"s_sleep {p.hdelay}")
        for x in stores: a(x)
        a.label(le)
    else:
        body(False)
        g.flush(a, p, "EH")
    if p.staged:
        a(f"""s_lshl_b32 s{S_T0}, s{S_RT}, 3
        s_add_u32 s{S_T0}, s{S_T0}, s{S_COL}
        s_lshl_b32 s{S_T0}, s{S_T0}, 2
        s_add_u32 s{S_T0}, s{S_T0}, s{S_WAVE}
        s_mul_i32 s{S_T0}, s{S_T0}, {3*128}
        s_add_u32 s{S_T0}, s{S_T0}, {FL2_OFF}
        v_mov_b32 v2, 1
        v_mov_b32 v3, 0
        s_mov_b64 exec, 1
        s_waitcnt vmcnt(10)
        buffer_store_dword v2, v3, {WSR}, s{S_T0} offen {p.stflags}
        s_waitcnt vmcnt(5)
        buffer_store_dword v2, v3, {WSR}, s{S_T0} offen offset:128 {p.stflags}
        s_waitcnt vmcnt(2)
        buffer_store_dword v2, v3, {WSR}, s{S_T0} offen offset:256 {p.stflags}
        s_mov_b64 exec, -1""")
    stamp(a, p, 5)
    stamp(a, p, 6)
    a("s_branch L2_c")

def consumer_entry(a, p, role):
    a.label(f"L_c{role}")
    if p.prioC: a(f"s_setprio {p.prioC}")
    a.label(f"L_c{role}_init")
    consumer_setup(a, p, role)
    kwait(a, p, ('ws',))
    stamp(a, p, 0)
    a("s_barrier")
    stamp(a, p, 1)
    for w in range(3):
        a(f"s_cmp_eq_u32 s{S_WAVE}, {w}\ns_cbranch_scc1 L_c{role}{w}")
    a(f"s_branch L_c{role}3")

def producer(a, p):
    a.label("L_prod")
    if p.prioP: a(f"s_setprio {p.prioP}")
    VWO = 8; VXO = 16; VT = 72
    a(f"""s_sub_u32 s{S_T5}, s{S_WAVE}, 4
    s_mul_i32 s{S_T0}, s{S_T5}, 48
    s_lshl_b32 s{S_T1}, s{S_RT}, 7
    s_cmp_eq_u32 s{S_ROLE}, 0
    s_cselect_b32 s{S_T2}, 16, 0
    s_sub_u32 s{S_T1}, s{S_T1}, s{S_T2}
    s_add_u32 s{S_T1}, s{S_T1}, s{S_T0}
    s_movk_i32 s{S_T3}, {XPITCH}
    v_lshrrev_b32 v{VT+2}, 3, v0
    v_add_u32 v{VT+2}, s{S_T1}, v{VT+2}
    v_lshrrev_b32 v{VT}, 4, v0
    v_xor_b32 v{VT}, v{VT}, v0
    v_and_b32 v{VT}, 7, v{VT}
    v_lshlrev_b32 v{VT}, 4, v{VT}                ; c0
    v_xor_b32 v{VT+1}, 64, v{VT}                 ; c1""")
    for n in range(6):
        a(f"""v_add_u32 v{VT+3}, {8*n}, v{VT+2}
        v_max_i32 v{VT+3}, 0, v{VT+3}
        v_mad_u32_u24 v{VXO+n}, v{VT+3}, s{S_T3}, v{VT+(n&1)}""")
    a(f"""s_cmp_eq_u32 s{S_T5}, 2
    s_cselect_b32 s{S_T0}, {OOB}, 0
    s_cmp_eq_u32 s{S_ROLE}, 0
    s_cselect_b32 s{S_T0}, 0, s{S_T0}
    v_add_u32 v{VXO+4}, s{S_T0}, v{VXO+4}
    v_add_u32 v{VXO+5}, s{S_T0}, v{VXO+5}""")
    for role in ('Q', 'H'):
        qkv = role == 'Q'
        if qkv: a(f"s_cmp_eq_u32 s{S_ROLE}, 0\ns_cbranch_scc0 L_prodH")
        else: a.label("L_prodH")
        nW = 6 if qkv else 5
        nX = 6
        XB = XBASE(p, role)
        rowslots = 36 if qkv else 28
        pitch = WQ_PITCH if qkv else W1_PITCH
        magic = {36: 1821, 28: 2341}[rowslots]
        for nn in range(64*nW*3): assert (nn*magic) >> 16 == nn // rowslots
        def wvoff(n):
            a(f"""v_add_u32 v{VT}, {64*n}, v{VT+7}
            v_mul_u32_u24 v{VT+1}, {magic}, v{VT}
            v_lshrrev_b32 v{VT+1}, 16, v{VT+1}
            v_mul_u32_u24 v{VT+2}, {rowslots}, v{VT+1}
            v_sub_u32 v{VT+2}, v{VT}, v{VT+2}
            v_lshrrev_b32 v{VT+3}, 2, v{VT+1}
            v_and_b32 v{VT+3}, 2, v{VT+3}""")
            if qkv:
                a(f"""v_mul_u32_u24 v{VT+4}, 43, v{VT+2}
                v_lshrrev_b32 v{VT+4}, 9, v{VT+4}
                v_mul_u32_u24 v{VT+6}, 12, v{VT+4}
                v_sub_u32 v{VT+6}, v{VT+2}, v{VT+6}
                v_xor_b32 v{VT+6}, v{VT+6}, v{VT+3}
                v_cmp_le_u32 vcc, s{S_THETA}, v{VT+6}
                v_mul_u32_u24 v{VT+1}, {pitch}, v{VT+1}
                v_cndmask_b32 v{VT+3}, 0, 2, vcc
                v_sub_u32 v{VT+6}, v{VT+6}, v{VT+3}
                v_mul_u32_u24 v{VT+4}, 1280, v{VT+4}
                v_lshl_add_u32 v{VT+1}, v{VT+6}, 4, v{VT+1}
                v_add3_u32 v{VWO+n}, v{VT+1}, v{VT+4}, s{S_T2}""")
            else:
                a(f"""v_xor_b32 v{VT+2}, v{VT+2}, v{VT+3}
                v_cmp_gt_u32 vcc, 32, v{VT+1}
                v_mul_u32_u24 v{VT+1}, {pitch}, v{VT+1}
                v_lshl_add_u32 v{VT+1}, v{VT+2}, 4, v{VT+1}
                v_add_u32 v{VT+1}, s{S_T2}, v{VT+1}
                v_cndmask_b32 v{VWO+n}, v{VT+5}, v{VT+1}, vcc""")
        a(f"""s_mul_i32 s{S_T0}, s{S_T5}, {64*nW}
        v_add_u32 v{VT+7}, s{S_T0}, v0
        v_mov_b32 v{VT+5}, {OOB}
        s_mul_i32 s{S_T3}, s{S_T5}, {nW*1024}
        s_mul_i32 s{S_T4}, s{S_T5}, {6*1024}
        s_add_u32 s{S_T4}, s{S_T4}, {XB}
        s_mov_b32 s{S_DT}, s{S_D0}
        s_mul_i32 s{S_T2}, s{S_COL}, {160 if qkv else 448}""")
        kwait(a, p, ('x', 'w') + (('ws',) if p.stamps else ()))
        stamp(a, p, 0)
        def dtable():
            base = 0
            for wi, wd in enumerate(WL(p)):
                if wi == 0:
                    a(f"s_mov_b32 s{S_T1}, s{S_D0}")
                else:
                    a(f"""s_mul_i32 s{S_T0}, s{S_RAW}, {(65536 + wd - 1)//wd}
                    s_lshr_b32 s{S_T0}, s{S_T0}, 16
                    s_mul_i32 s{S_T0}, s{S_T0}, {wd}
                    s_sub_u32 s{S_T1}, s{S_RAW}, s{S_T0}""")
                    if not p.rot: a(f"s_mov_b32 s{S_T1}, 0")
                for k in range(wd):
                    m = base + k
                    if m == 0: continue
                    a(f"""s_add_u32 s{S_DT+m}, s{S_T1}, {k}
                    s_cmp_ge_u32 s{S_DT+m}, {wd}
                    s_cselect_b32 s{S_T0}, {wd}, 0
                    s_sub_u32 s{S_DT+m}, s{S_DT+m}, s{S_T0}""")
                    if base: a(f"s_add_u32 s{S_DT+m}, s{S_DT+m}, {base}")
                base += wd
        vm = VmTracker()
        def dma_w(st, first=False):
            m, h = divmod(st, 2)
            a(f"s_mul_i32 s{S_WOFF}, s{S_DT+m}, {64*pitch}")
            if h: a(f"s_add_u32 s{S_WOFF}, s{S_WOFF}, {32*pitch}")
            for n in range(nW):
                if first: wvoff(n)
                if not p.nodma: a(f"""s_add_u32 m0, s{S_T3}, {(st % p.NW)*SW(role) + n*1024}
                s_nop 0
                buffer_load_dwordx4 v{VWO+n}, {WW}, s{S_WOFF} offen lds""")
            vm.issue(('W', st), nW)
        def dma_x(d, part):
            a(f"s_lshl_b32 s{S_XOFF}, s{S_DT+d}, 7")
            for n in (range(0, 3) if part == 0 else range(3, 6)):
                if not p.nodma: a(f"""s_add_u32 m0, s{S_T4}, {(d % p.NX)*SX + n*1024}
                s_nop 0
                buffer_load_dwordx4 v{VXO+n}, {XS}, s{S_XOFF} offen lds""")
            vm.issue(('x', d), 3)
        wq = list(range(20)); xq = [(d, pt) for d in range(10) for pt in range(2)]
        sched = {}
        pro = []
        for kind, i in p.ramp:
            if kind == 'W': pro.append(('W', i)); wq.remove(i)
            else:
                for pt in range(2): pro.append(('x', i, pt)); xq.remove((i, pt))
        sched[-1] = pro
        if not p.dbar:
            for sI in range(20):
                items = []
                budget = p.maxw
                while wq and wq[0] <= sI + p.NW - 1 and budget > 0:
                    items.append(('W', wq.pop(0))); budget -= 1
                nxh = 0
                while xq and (2*(xq[0][0] - p.NX) + 1 <= sI) and nxh < p.maxx:
                    d, pt = xq.pop(0); items.append(('x', d, pt)); nxh += 1
                items.sort(key=lambda t: (t[1] - 2 if t[0] == 'W' else 2*t[1] - 2))
                sched[sI] = items
            bars = list(range(-1, 20))
            def need_at(sI):
                n = set()
                if sI + 2 < 20: n |= {('W', sI + 2), ('x', (sI + 2)//2)}
                return n
        else:
            for sI in range(20): sched[sI] = []
            def fill(sI, wmax, xmax, budget):
                items = []
                while wq and wq[0] <= wmax and budget > 0:
                    items.append(('W', wq.pop(0))); budget -= 1
                while xq and xq[0][0] <= xmax:
                    d, pt = xq.pop(0); items.append(('x', d, pt))
                items.sort(key=lambda t: (t[1] if t[0] == 'W' else 2*t[1] - 1))
                sched[sI] = items
            fill(0, p.NW - 1, 2, 2)
            fill(1, p.NW, 2, 2)
            for m in range(1, 10): fill(2*m, 2*m + p.NW - 1, m + p.NX - 1, 4)
            bars = [-1, 0, 1] + [2*m for m in range(1, 10)]
            def need_at(sI):
                if sI == 0: return {('W', 2), ('x', 1)}
                m = sI // 2 if sI >= 2 else 0
                n = {('W', k) for k in range(2*m + 2, min(2*m + 5, 20))} | {('x', d) for d in (m + 1, m + 2) if d < 10}
                return n
        assert not wq and not xq, (wq, xq)
        dt_done = [False]
        for sI in bars:
            if sI == -1: stamp(a, p, 4)
            for it in sched[sI]:
                if sI == -1 and it[0] != 'x' and it[1] >= 2 and not dt_done[0]:
                    dtable(); dt_done[0] = True
                if sI == -1 and it[0] == 'x' and it[1] >= 1 and not dt_done[0]:
                    dtable(); dt_done[0] = True
                if it[0] == 'W': dma_w(it[1], first=(it[1] == 0))
                else: dma_x(it[1], it[2])
            if sI == -1 and not dt_done[0]:
                dtable(); dt_done[0] = True
            need = need_at(sI) if sI >= 0 else {('W', 0), ('W', 1), ('x', 0)}
            if sI == bars[-1]: need = set(vm.q)
            issued = set()
            for k in range(-1, sI + 1):
                for it in sched.get(k, []): issued.add((it[0], it[1]))
            for t in need: assert t in issued or sI == bars[-1], (sI, t)
            vm.wait(a, need)
            if sI == -1: stamp(a, p, 3)
            a("s_barrier")
            if sI == -1: stamp(a, p, 1)
        stamp(a, p, 2)
        a(f"s_mov_b32 s{S_NPRE}, {FLG(p, 'H')}")
        a("s_branch L2_p")

class VmTracker:
    def __init__(self): self.q = []
    def issue(self, tag, n=1): self.q.extend([tag]*n)
    def wait(self, a, tags):
        idx = -1
        for i, t in enumerate(self.q):
            if t in tags: idx = i
        if idx < 0: return
        n = len(self.q) - 1 - idx
        assert n <= 63
        a(f"s_waitcnt vmcnt({n})")
        self.q = self.q[idx+1:]

TSL = [20, 22, 34, 36, 38, 40, 72, 80, 82, 52]
def j2ks(p):
    if not p.staged: return ""
    t, r, sl, u = S_T0, S_CNT, 44, 45
    return f"""s_sub_u32 s{t}, s{S_T1}, 20
        s_lshr_b32 s{r}, s{t}, 3
        s_and_b32 s{sl}, s{t}, 7
        s_sub_u32 s{u}, s{t}, 40
        s_cmp_ge_u32 s{t}, 40
        s_cselect_b32 s{r}, 5, s{r}
        s_cselect_b32 s{sl}, s{u}, s{sl}
        s_cmp_ge_u32 s{S_T1}, 67
        s_cselect_b32 s{t}, 1, 0
        s_add_u32 s{r}, s{r}, s{t}
        s_mul_i32 s{t}, s{t}, 7
        s_sub_u32 s{sl}, s{sl}, s{t}
        s_mul_i32 s{sl}, s{sl}, 7
        s_add_u32 s{sl}, s{sl}, s{r}
        s_add_u32 s{sl}, s{sl}, 20
        s_cmp_lt_u32 s{S_T1}, 20
        s_cselect_b32 s{S_T1}, s{S_T1}, s{sl}"""
def ksmap(p):
    ks, _ = relayout_order(p)
    segs = []
    for j, k in enumerate(ks):
        if not segs or k - j != segs[-1][1]: segs.append([j, k - j])
    out = [f"s_mov_b32 s{S_T0}, {segs[-1][1]}"]
    for idx in range(len(segs) - 2, -1, -1):
        out.append(f"s_cmp_lt_u32 s{S_T1}, {segs[idx+1][0]}")
        out.append(f"s_cselect_b32 s{S_T0}, {segs[idx][1]}, s{S_T0}")
    out.append(f"s_add_u32 s{S_T1}, s{S_T1}, s{S_T0}")
    return "\n".join(out)
def utility(a, p):
    a.label("L_util")
    if p.prioU: a(f"s_setprio {p.prioU}")
    kwait(a, p, ('x', 'ws', 'dbg', 'w2'))
    stamp(a, p, 0)
    vm = VmTracker()
    X0 = 32
    LL = f"s[{S_SRD_L}:{S_SRD_L+3}]"
    RLR = [p.rlrole]
    a(f"""s_lshl_b32 s{S_T0}, s{S_RT}, 7
    s_lshl_b32 s{S_T2}, s{S_IDX}, 3
    s_add_u32 s{S_T0}, s{S_T0}, s{S_T2}
    v_lshrrev_b32 v8, 3, v0
    v_add_u32 v8, s{S_T0}, v8
    v_and_b32 v9, 7, v0
    v_mul_u32_u24 v10, {XPITCH}, v8
    v_lshl_add_u32 v10, v9, 4, v10""")
    for i in range(10):
        a(f"buffer_load_dwordx4 v[{X0+4*i}:{X0+4*i+3}], v10, {XS}, 0 offen offset:{128*i}")
    vm.issue('st', 10)
    a(f"v_lshlrev_b32 v11, 2, v8\nv_add_u32 v11, {ST_OFF}, v11")
    if p.codepf:
        a(f"""s_and_b32 s{S_T0}, s{S_LI}, 7
        s_lshl_b32 s{S_T0}, s{S_T0}, 13
        v_lshlrev_b32 v15, 7, v0
        v_add_u32 v15, s{S_T0}, v15
        s_mov_b32 s{S_T1}, L_text_end-L_text_begin-4
        v_min_u32 v15, s{S_T1}, v15
        v_and_b32 v15, 0xfffffffc, v15
        global_load_dword v29, v15, s[{S_PC}:{S_PC+1}]""")
        vm.issue('code')
    if p.tlbtouch:
        a(f"""v_lshlrev_b32 v15, 21, v0
        v_cmp_gt_u32 vcc, 13, v0
        v_mov_b32 v16, {OOB}
        s_nop 0
        v_cndmask_b32 v15, v16, v15, vcc
        buffer_load_dword v124, v15, {WSR}, 0 offen""")
        vm.issue('tlb')
        srd(a, S_SRD_L, S_OUTP, S_OUTP+1, 2048*1280)
        a(f"""v_lshlrev_b32 v15, 21, v0
        v_cmp_gt_u32 vcc, 2, v0
        s_nop 1
        v_cndmask_b32 v15, v16, v15, vcc
        buffer_load_dword v125, v15, s[{S_SRD_L}:{S_SRD_L+3}], 0 offen""")
        vm.issue('tlb')
    SU = 66
    def rl_setup():
        a(f"""v_lshrrev_b32 v72, 3, v0
        v_lshrrev_b32 v73, 4, v0
        v_lshlrev_b32 v73, 1, v73
        v_and_b32 v74, 7, v0
        v_xor_b32 v74, v74, v73
        v_mul_u32_u24 v72, 1280, v72
        v_lshl_add_u32 v76, v74, 4, v72
        v_add_u32 v77, {8*1280}, v76
        v_add_u32 v78, {16*1280}, v76
        v_add_u32 v79, {24*1280}, v76
        s_lshl_b32 s{S_T3}, s{S_RT}, 3
        s_add_u32 s{S_T3}, s{S_T3}, s{S_COL}""")
    def rl_setup2():
        a(f"""v_lshrrev_b32 v72, 2, v0
        v_bfe_u32 v73, v0, 3, 2
        v_lshlrev_b32 v73, 1, v73
        v_bfe_u32 v74, v0, 1, 1
        v_and_b32 v75, 1, v0
        v_lshlrev_b32 v72, 7, v72
        v_lshl_add_u32 v72, v75, 3, v72
        v_lshl_add_u32 v72, v74, 4, v72""")
        for q in range(4):
            a(f"v_xor_b32 v74, {2*q}, v73\nv_lshl_add_u32 v{80+q}, v74, 4, v72")
        a("v_lshlrev_b32 v84, 4, v0")
    def SI(n): return 4 + n if n < 4 else 31 + (n - 4)
    SPR = [33, 42, 43, 46, 47, 51]
    def SP(n): return SPR[n]
    def rl_issue(n):
        so, si = SU + n, SI(n)
        a(f"""s_add_u32 s{S_T4}, s{S_T3}, {128*n}
        s_mul_i32 s{S_T1}, s{S_T4}, 6554
        s_lshr_b32 s{S_T1}, s{S_T1}, 16
        s_mul_i32 s{S_T0}, s{S_T1}, 10
        s_sub_u32 s{S_T2}, s{S_T4}, s{S_T0}
        {ksmap(p)}
        s_lshl_b32 s{S_T0}, s{S_T2}, 2
        s_mul_i32 s{so}, s{S_T0}, 13108
        s_lshr_b32 s{so}, s{so}, 16
        s_mul_i32 s{S_T5}, s{so}, 5
        s_sub_u32 s{si}, s{S_T0}, s{S_T5}
        s_mul_i32 s{so}, s{so}, 74
        s_add_u32 s{so}, s{so}, s{S_T1}
        s_mul_i32 s{so}, s{so}, 5120
        s_lshl_b32 s{S_T0}, s{si}, 10
        s_add_u32 s{so}, s{so}, s{S_T0}
        s_add_u32 s{so}, s{so}, {BF_OFF}
        s_cmp_ge_u32 s{S_T4}, 740
        s_cselect_b32 s{so}, {OOB}, s{so}
        s_cselect_b32 s{S_T5}, {OOB}, 0
        {j2ks(p)}
        s_mul_i32 s{S_T0}, s{S_T1}, 13108
        s_lshr_b32 s{S_T0}, s{S_T0}, 16
        s_mul_i32 s{S_T0}, s{S_T0}, 5
        s_sub_u32 s{S_T0}, s{S_T1}, s{S_T0}             ; ks % 5
        s_cmp_eq_u32 s{S_T0}, 2
        s_cselect_b32 s{S_T0}, 1, 0
        s_cmp_lt_u32 s{S_T1}, 20
        s_cselect_b32 s{SP(n)}, s{S_T0}, 0
        s_cselect_b32 s{S_SRD_L}, s{S_WOP}, s{S_W2P}
        s_cselect_b32 s{S_SRD_L+1}, s{S_WOP+1}, s{S_W2P+1}
        s_mov_b32 s{S_T0}, {1728*1280}
        s_cselect_b32 s{S_SRD_L+2}, {640*1280}, s{S_T0}
        s_cselect_b32 s{S_T0}, 0, 20
        s_and_b32 s{S_SRD_L+1}, s{S_SRD_L+1}, 0xffff
        s_mov_b32 s{S_SRD_L+3}, 0x20000
        s_sub_u32 s{S_T0}, s{S_T1}, s{S_T0}
        s_mul_i32 s{S_T0}, s{S_T0}, {32*1280}
        s_lshl_b32 s{S_T2}, s{S_T2}, 7
        s_add_u32 s{S_T0}, s{S_T0}, s{S_T2}
        s_add_u32 s{S_T0}, s{S_T0}, s{S_T5}""")
        for i in range(4):
            a(f"""s_mov_b32 m0, {RLADDR(p, RLR[0], n) + i*1024}
            s_nop 0
            buffer_load_dwordx4 v{76+i}, {LL}, s{S_T0} offen lds""")
        vm.issue(('rl', n), 4)
    def rl_read(n):
        vm.wait(a, {('rl', n)})
        D0 = 88 + 16*(n & 1)
        base = RLADDR(p, RLR[0], n)
        lsp = a.newlabel("L_rlsp"); ldn = a.newlabel("L_rldn")
        a(f"s_cmp_eq_u32 s{SP(n)}, 1\ns_cbranch_scc1 {lsp}")
        for q in range(4): a(f"v_add_u32 v{120+q}, {base}, v{80+q}")
        for q in range(4):
            d = D0 + 4*q
            a(f"ds_read_b64_tr_b16 v[{d}:{d+1}], v{120+q}")
            a(f"ds_read_b64_tr_b16 v[{d+2}:{d+3}], v{120+q} offset:2048")
        a(f"s_branch {ldn}")
        a.label(lsp)
        a(f"""v_lshrrev_b32 v124, 4, v0
        v_and_b32 v125, 1, v124
        v_lshrrev_b32 v124, 1, v124
        v_lshl_add_u32 v124, v125, 1, v124
        v_bfe_u32 v125, v0, 2, 2
        v_lshl_add_u32 v124, v124, 3, v125
        v_lshlrev_b32 v124, 7, v124
        v_and_b32 v126, 1, v0
        v_lshl_add_u32 v124, v126, 3, v124
        v_add_u32 v124, {base}, v124
        v_lshrrev_b32 v125, 1, v125
        v_lshlrev_b32 v125, 1, v125
        v_bfe_u32 v126, v0, 1, 1""")
        for q in range(4):
            d = D0 + 4*q
            a(f"""v_add_u32 v127, {2*q}, v126
            v_xor_b32 v128, v127, v125
            v_lshl_add_u32 v128, v128, 4, v124
            ds_read_b64_tr_b16 v[{d}:{d+1}], v128
            v_xor_b32 v129, 4, v125
            v_xor_b32 v129, v127, v129
            v_lshl_add_u32 v129, v129, 4, v124
            ds_read_b64_tr_b16 v[{d+2}:{d+3}], v129 offset:512""")
        a.label(ldn)
    def rl_store(n):
        so, si = SU + n, SI(n)
        D0 = 88 + 16*(n & 1)
        a(f"s_movk_i32 s{S_T2}, 0x400\ns_waitcnt lgkmcnt(0)")
        for q in range(4):
            d = D0 + 4*q
            a(f"buffer_store_dwordx4 v[{d}:{d+3}], v84, {WSR}, s{so} offen {p.stflags}")
            if q < 3:
                a(f"""s_cmp_eq_u32 s{si}, 4
                s_cselect_b32 s{S_T0}, {74*5120 - 4096}, s{S_T2}
                s_cselect_b32 s{si}, -1, s{si}
                s_add_u32 s{so}, s{so}, s{S_T0}
                s_add_u32 s{si}, s{si}, 1""")
        vm.issue(('rs', n), 4)
    def stats_compute():
        vm.wait(a, {'st'})
        a(f"""v_mov_b32 v28, 0x3f803f80
        v_mov_b32 v24, 0
        v_mov_b32 v25, 0
        v_mov_b32 v26, 0
        v_mov_b32 v27, 0""")
        for i in range(40):
            a(f"v_dot2_f32_bf16 v{24+(i&1)}, v{X0+i}, v28, v{24+(i&1)}")
            a(f"v_dot2_f32_bf16 v{26+(i&1)}, v{X0+i}, v{X0+i}, v{26+(i&1)}")
        a("s_nop 2\nv_add_f32 v24, v24, v25\nv_add_f32 v26, v26, v27")
        for mod in ("quad_perm:[1,0,3,2]", "quad_perm:[2,3,0,1]", "row_half_mirror"):
            a(f"v_add_f32_dpp v24, v24, v24 {mod} row_mask:0xf bank_mask:0xf")
            a(f"v_add_f32_dpp v26, v26, v26 {mod} row_mask:0xf bank_mask:0xf")
        a(f"""v_mul_f32 v24, {f2u(1/640.):#x}, v24
        v_mul_f32 v26, {f2u(1/640.):#x}, v26
        v_fma_f32 v26, -v24, v24, v26
        v_max_f32 v26, 0, v26
        v_add_f32 v26, {f2u(EPS):#x}, v26
        v_rsq_f32 v26, v26
        s_mov_b32 exec_lo, 0x01010101
        s_mov_b32 exec_hi, 0x01010101
        buffer_store_dword v24, v11, {WSR}, 0 offen {p.stflags}
        v_add_u32 v11, 8192, v11
        buffer_store_dword v26, v11, {WSR}, 0 offen {p.stflags}
        s_mov_b64 exec, -1""")
        vm.issue('sts', 2)
    def atomic(slot, rt_s):
        a(f"""v_mov_b32 v8, 1
        s_lshl_b32 s{S_T0}, s{rt_s}, 4
        s_add_u32 s{S_T0}, s{S_T0}, {4*slot}
        v_mov_b32 v9, s{S_T0}
        s_mov_b64 exec, 1
        buffer_atomic_add v8, v9, {DBG}, 0 offen sc1
        s_mov_b64 exec, -1""")
        vm.issue('atom')
    def spin(vaddr, vthr, vval, first_tag, sleep=4, srd_=None, x2=False):
        srd_ = srd_ or DBG
        lp = a.newlabel("L_poll"); lk = a.newlabel("L_pollok")
        vm.wait(a, {first_tag})
        a(f"s_mov_b32 s{S_CNT}, 0")
        a.label(lp)
        if x2: a(f"v_min_u32 v{vval}, v{vval}, v{vval+1}")
        ld = f"buffer_load_dwordx2 v[{vval}:{vval+1}]" if x2 else f"buffer_load_dword v{vval}"
        a(f"""v_cmp_ge_u32 vcc, v{vval}, v{vthr}
        s_nop 4
        s_cmp_eq_u64 vcc, -1
        s_cbranch_scc1 {lk}
        s_add_u32 s{S_CNT}, s{S_CNT}, 1
        s_cmp_ge_u32 s{S_CNT}, 0x40000
        s_cbranch_scc1 {lk}
        s_sleep {sleep}
        {ld}, v{vaddr}, {srd_}, 0 offen sc1
        s_waitcnt vmcnt(0)
        s_branch {lp}""")
        a.label(lk)
    def flag_store(kind, val):
        if kind == 'hq':
            a(f"""s_lshl_b32 s{S_T0}, s{S_RT}, 4
            s_add_u32 s{S_T0}, s{S_T0}, s{S_IDX}
            s_lshl_b32 s{S_T0}, s{S_T0}, 7
            s_add_u32 s{S_T0}, s{S_T0}, {FL_OFF}""")
        else:
            a(f"""s_lshl_b32 s{S_T0}, s{S_RT}, 3
            s_add_u32 s{S_T0}, s{S_T0}, s{S_COL}
            s_lshl_b32 s{S_T0}, s{S_T0}, {2 if (kind == 'fb2' and p.fb2dense) else 7}
            s_add_u32 s{S_T0}, s{S_T0}, {FL_OFF + 65536 + (16384 if kind == 'fb2' else 0)}""")
        a(f"""v_mov_b32 v8, {val}
        v_mov_b32 v9, 0
        s_mov_b64 exec, 1
        buffer_store_dword v8, v9, {WSR}, s{S_T0} offen {p.stflags}
        s_mov_b64 exec, -1""")
        vm.issue('fl')
    for role in ('Q', 'H'):
        H = role == 'H'
        ST_ = STAT(p, role)
        if role == 'Q':
            q_pre = list(vm.q)
            a(f"s_cmp_eq_u32 s{S_ROLE}, 0\ns_cbranch_scc0 L_utilH")
        else:
            vm.q = list(q_pre)
            a.label("L_utilH")
        a(f"v_mov_b32 v30, {FLG(p, role)}\nv_mov_b32 v31, 0\nds_write_b32 v30, v31")
        if H and p.rlmode == 'early':
            rl_setup()
            for n in range(6): rl_issue(n)
            rl_setup2()
        flag_store('hq', 0)
        if H and p.staged:
            a(f"""s_lshl_b32 s{S_T0}, s{S_RT}, 3
            s_add_u32 s{S_T0}, s{S_T0}, s{S_COL}
            s_mul_i32 s{S_T0}, s{S_T0}, {12*128}
            s_add_u32 s{S_T0}, s{S_T0}, {FL2_OFF}
            v_lshlrev_b32 v9, 7, v0
            v_mov_b32 v8, 0
            s_mov_b64 exec, 0xfff
            buffer_store_dword v8, v9, {WSR}, s{S_T0} offen {p.stflags}
            s_mov_b64 exec, -1""")
            vm.issue('fl')
        RLW = (role == p.rlrole)
        if RLW: flag_store('fb', 0); flag_store('fb2', 0)
        stats_compute()
        a("s_waitcnt lgkmcnt(0)")
        stamp(a, p, 3)
        a("s_barrier")
        stamp(a, p, 1)
        acts = {s: [] for s in range(20)}
        def atom_stats():
            vm.wait(a, {'sts'}); atomic(0, S_RT)
        acts[2].append(atom_stats)
        def atom_fb():
            vm.wait(a, {('rs', 5)}); flag_store('fb', 1)
        if H and p.rlmode == 'early':
            for n in range(6):
                acts[1 + n].append(lambda n=n: rl_store(n))
                acts[0 + n].append(lambda n=n: rl_read(n))
            acts[p.fbstep].append(atom_fb)
        if H and p.rlmode == 'mid':
            r0 = p.rlstep
            acts[r0 - 2].append(rl_setup); acts[r0 - 1].append(rl_setup2)
            acts[r0].append(lambda: [rl_issue(n) for n in range(3)])
            acts[r0 + 1].append(lambda: [rl_issue(n) for n in range(3, 6)])
            for k in range(3):
                acts[r0 + 4 + k].append(lambda k=k: (rl_read(2*k), rl_read(2*k + 1)))
                acts[r0 + 5 + k].insert(0, lambda k=k: (rl_store(2*k), rl_store(2*k + 1)))
            acts[min(r0 + 9, 19)].append(atom_fb)
        if H and p.rlmode == 'tail':
            acts[5].append(rl_setup); acts[6].append(rl_setup2)
            acts[16].append(lambda: [rl_issue(n) for n in range(3)])
            acts[17].append(lambda: [rl_issue(n) for n in range(3, 6)])
        if RLW and p.rlmode == 'split':
            NE = p.rlNE; r0 = p.rlstep
            acts[r0 - 2].append(rl_setup); acts[r0 - 1].append(rl_setup2)
            acts[r0].append(lambda: [rl_issue(n) for n in range(NE)])
            for n in range(NE):
                acts[r0 + 4 + n].append(lambda n=n: rl_read(n))
                acts[r0 + 5 + n].insert(0, lambda n=n: rl_store(n))
            def fb1():
                vm.wait(a, {('rs', NE - 1)}); flag_store('fb', 1)
            acts[r0 + 7 + NE].append(fb1)
            if H:
                acts[16].append(lambda: [rl_issue(n) for n in range(NE, NE + 2)])
                acts[17].append(lambda: [rl_issue(n) for n in range(NE + 2, 6)])
            else:
                acts[18].append(lambda: [rl_issue(n) for n in range(NE, NE + 2)])
                acts[19].append(lambda: [rl_issue(n) for n in range(NE + 2, 6)])
        def poll1_issue():
            a(f"""v_lshlrev_b32 v17, 4, v0
            v_mov_b32 v18, 16
            v_mov_b32 v22, 0
            v_cmp_lt_u32 vcc, 15, v0
            s_nop 1
            v_cndmask_b32 v18, v18, v22, vcc
            buffer_load_dword v19, v17, {DBG}, 0 offen sc1""")
            vm.issue('poll')
        def poll1_check():
            spin(17, 18, 19, 'poll', 4)
            a(f"s_lshl_b32 s{S_T0}, s{S_RT}, 7")
            if not H: a(f"s_sub_u32 s{S_T0}, s{S_T0}, 16")
            for k in range(3 if not H else 2):
                a(f"""v_add_u32 v15, {64*k}, v0
                v_add_u32 v15, s{S_T0}, v15
                v_max_i32 v15, 0, v15
                v_min_i32 v15, 2047, v15
                v_lshlrev_b32 v15, 2, v15
                v_add_u32 v15, {ST_OFF}, v15
                buffer_load_dword v{40+k}, v15, {WSR}, 0 offen sc1
                v_add_u32 v15, 8192, v15
                buffer_load_dword v{44+k}, v15, {WSR}, 0 offen sc1""")
                vm.issue('sl', 2)
        acts[p.pollstep].append(poll1_issue)
        acts[p.pollstep + 2].append(poll1_check)
        if p.fbmode == 'tail17':
            def fb_issue():
                a(f"""v_lshlrev_b32 v48, 7, v0
                v_add_u32 v48, {FL_OFF + 65536}, v48
                v_add_u32 v49, 8192, v48
                buffer_load_dword v50, v48, {WSR}, 0 offen sc1
                buffer_load_dword v51, v49, {WSR}, 0 offen sc1""")
                vm.issue('fb', 2)
            def fb_check():
                lp = a.newlabel("L_fb"); lk = a.newlabel("L_fbok")
                vm.wait(a, {'fb'})
                a(f"s_mov_b32 s{S_CNT}, 0")
                a.label(lp)
                a(f"""v_min_u32 v50, v50, v51
                v_cmp_le_u32 vcc, 1, v50
                s_nop 4
                s_cmp_eq_u64 vcc, -1
                s_cbranch_scc1 {lk}
                s_add_u32 s{S_CNT}, s{S_CNT}, 1
                s_cmp_ge_u32 s{S_CNT}, 0x40000
                s_cbranch_scc1 {lk}
                s_sleep {p.sleepB}
                buffer_load_dword v50, v48, {WSR}, 0 offen sc1
                buffer_load_dword v51, v49, {WSR}, 0 offen sc1
                s_waitcnt vmcnt(0)
                s_branch {lp}""")
                a.label(lk)
                a("v_mov_b32 v31, 1\nds_write_b32 v30, v31\ns_waitcnt lgkmcnt(0)")
                stamp(a, p, 3)
            acts[p.pollstep + 2].append(fb_issue)
            post_loop = [fb_check]
        else:
            post_loop = []
        for s in range(20):
            if p.stamps and not p.p2stamps and s % 2 == 0: a(f"s_memtime s[{TSL[s//2]}:{TSL[s//2]+1}]")
            for f in acts[s]: f()
            if not p.dbar or s == 0 or s % 2 == 1: a("s_barrier")
        vm.wait(a, {'sl'})
        a(f"v_lshlrev_b32 v15, 2, v0\nv_add_u32 v15, {ST_}, v15")
        for k in range(3 if not H else 2):
            if k == 2: a("s_mov_b64 exec, 0xffff")
            a(f"ds_write_b32 v15, v{40+k} offset:{256*k}")
            a(f"ds_write_b32 v15, v{44+k} offset:{576 + 256*k}")
        a("s_mov_b64 exec, -1\ns_waitcnt lgkmcnt(0)\ns_barrier")
        for f in post_loop: f()
        stamp(a, p, 2)
        a(f"""s_lshr_b32 s{S_T3}, s{S_RT2}, 1
        s_lshl_b32 s{S_T3}, s{S_T3}, 4
        s_mov_b32 s{S_STG}, s{S_T3}""")
        def poll_FB(sleep):
            lp = a.newlabel("L_fb"); lk = a.newlabel("L_fbok")
            a(f"""v_lshlrev_b32 v17, 7, v0
            v_add_u32 v17, {FL_OFF + 65536}, v17
            v_add_u32 v16, 8192, v17
            s_mov_b32 s{S_CNT}, 0""")
            a.label(lp)
            a(f"""buffer_load_dword v20, v17, {WSR}, 0 offen sc1
            buffer_load_dword v21, v16, {WSR}, 0 offen sc1
            s_waitcnt vmcnt(0)
            v_min_u32 v20, v20, v21
            v_cmp_le_u32 vcc, 1, v20
            s_nop 4
            s_cmp_eq_u64 vcc, -1
            s_cbranch_scc1 {lk}
            s_add_u32 s{S_CNT}, s{S_CNT}, 1
            s_cmp_ge_u32 s{S_CNT}, 0x40000
            s_cbranch_scc1 {lk}
            s_sleep {sleep}
            s_branch {lp}""")
            a.label(lk)
            vm.q = []
        def hq_setup(first):
            a(f"""s_lshr_b32 s{S_T0}, s{S_RT2}, 1
            s_lshl_b32 s{S_T0}, s{S_T0}, 4
            s_add_u32 s{S_T0}, s{S_T0}, {first}
            s_lshl_b32 s{S_T0}, s{S_T0}, 7
            s_add_u32 s{S_T0}, s{S_T0}, {FL_OFF}
            v_lshlrev_b32 v17, 7, v0
            v_add_u32 v17, s{S_T0}, v17
            v_mov_b32 v18, 1
            v_mov_b32 v22, 0
            v_mov_b32 v23, {OOB}
            v_cmp_lt_u32 vcc, 7, v0
            s_nop 1
            v_cndmask_b32 v18, v18, v22, vcc
            v_cndmask_b32 v17, v17, v23, vcc""")
        def set_flag(v):
            a(f"v_mov_b32 v31, {v}\nds_write_b32 v30, v31\ns_waitcnt lgkmcnt(0)")
        def poll_pipelined(depth):
            lp = a.newlabel("L_pp"); lk = a.newlabel("L_ppok")
            a("s_waitcnt vmcnt(0)")
            vm.q = []
            for k in range(depth): a(f"buffer_load_dword v{24+k}, v17, {WSR}, 0 offen sc1\ns_sleep {p.ppgap}")
            a(f"s_mov_b32 s{S_CNT}, 0")
            a.label(lp)
            for k in range(depth):
                a(f"""s_waitcnt vmcnt({depth-1})
                v_cmp_ge_u32 vcc, v{24+k}, v18
                s_nop 4
                s_cmp_eq_u64 vcc, -1
                s_cbranch_scc1 {lk}
                buffer_load_dword v{24+k}, v17, {WSR}, 0 offen sc1
                s_sleep {p.ppgap}""")
            a(f"""s_add_u32 s{S_CNT}, s{S_CNT}, 1
            s_cmp_lt_u32 s{S_CNT}, 0x10000
            s_cbranch_scc1 {lp}""")
            a.label(lk)
        def need_mask(slices):
            m = sum(1 << x for x in slices)
            a(f"""s_mov_b32 s{S_T0}, {m}
            s_mov_b32 s{S_T1}, 0
            v_mov_b32 v18, 1
            v_cndmask_b32 v18, v22, v18, s[{S_T0}:{S_T1}]""".replace(f"s[{S_T0}:{S_T1}]", "s[28:29]").replace(f"s_mov_b32 s{S_T0}, {m}\n", f"s_mov_b32 s28, {m}\n").replace(f"s_mov_b32 s{S_T1}, 0", "s_mov_b32 s29, 0"))
        if H:
            if p.rlmode == 'tail':
                for n in range(6):
                    rl_read(n); rl_store(n)
                atom_fb()
            if p.rlmode == 'split' and RLW:
                for n in range(p.rlNE, 6):
                    rl_read(n); rl_store(n)
                vm.wait(a, {('rs', 5)}); flag_store('fb2', 1)
            a("s_barrier")
            if p.stamps: a("s_memrealtime s[12:13]")
            if not p.staged: flag_store('hq', 1)
            stamp(a, p, 6)
        else:
            a("s_barrier")
            stamp(a, p, 6)
            if p.rlmode == 'split' and RLW:
                for n in range(p.rlNE, 6):
                    rl_read(n); rl_store(n)
        if p.fbmode != 'tail17':
            poll_FB(p.sleepB); set_flag(1)
            stamp(a, p, 3)
        delay = p.predelayH if H else p.predelayQ
        if delay: a(f"s_sleep {delay}")
        def st_setup(grp):
            a(f"""s_lshr_b32 s{S_T0}, s{S_RT2}, 1
            s_lshl_b32 s{S_T0}, s{S_T0}, 5
            s_and_b32 s{S_T1}, s{S_RT2}, 1
            s_lshl_b32 s{S_T1}, s{S_T1}, 1
            s_add_u32 s{S_T0}, s{S_T0}, s{S_T1}
            s_mul_i32 s{S_T0}, s{S_T0}, {3*128}
            s_add_u32 s{S_T0}, s{S_T0}, {FL2_OFF + grp*128}
            v_lshrrev_b32 v17, 1, v0
            v_lshlrev_b32 v17, 2, v17
            v_and_b32 v18, 1, v0
            v_add_u32 v17, v17, v18
            v_mul_u32_u24 v17, {3*128}, v17
            v_add_u32 v17, s{S_T0}, v17
            v_mov_b32 v18, 1
            v_mov_b32 v22, 0
            v_mov_b32 v23, {OOB}
            v_cmp_lt_u32 vcc, 15, v0
            s_nop 1
            v_cndmask_b32 v18, v18, v22, vcc
            v_cndmask_b32 v17, v17, v23, vcc""")
        if p.staged:
            st_setup(0); req = set(range(8))
        else:
            hq_setup(8); req = set().union(*[slices_of(p, role, q) for q in range(p.NS2 - 1)]); need_mask(req)
        a(f"buffer_load_dword v19, v17, {WSR}, 0 offen sc1"); vm.issue('pp')
        if (not H) and p.rlmode == 'split' and RLW:
            vm.wait(a, {'pp'}); flag_store('fb2', 1); vm.issue('pp0')
            spin(17, 18, 19, 'none', p.sleepA, WSR)
        elif p.ppdepth and (H or p.ppQ):
            lp = a.newlabel("L_pp"); lk = a.newlabel("L_ppok")
            regs = [19, 24, 25, 26][:p.ppdepth]
            for r in regs[1:]:
                a(f"s_sleep {p.ppgap}\nbuffer_load_dword v{r}, v17, {WSR}, 0 offen sc1")
            a(f"s_mov_b32 s{S_CNT}, 0")
            a.label(lp)
            for r in regs:
                a(f"""s_waitcnt vmcnt({p.ppdepth - 1})
                v_cmp_ge_u32 vcc, v{r}, v18
                s_nop 4
                s_cmp_eq_u64 vcc, -1
                s_cbranch_scc1 {lk}
                s_sleep {p.ppgap}
                buffer_load_dword v{r}, v17, {WSR}, 0 offen sc1""")
            a(f"""s_add_u32 s{S_CNT}, s{S_CNT}, 1
            s_cmp_lt_u32 s{S_CNT}, 0x10000
            s_cbranch_scc1 {lp}""")
            a.label(lk)
            vm.q = ['stale'] * 4
        else:
            spin(17, 18, 19, 'pp', p.sleepA, WSR)
        if p.stamps: a("s_memrealtime s[14:15]")
        set_flag(2)
        stamp(a, p, 4)
        a("s_barrier")
        gates = {}
        for q in range(p.NS2 - 1, 27):
            sl = slices_of(p, role, q)
            if not sl <= req:
                req = req | sl
                gates[q - p.NS2] = set(req)
        if p.staged: gates = {}
        first_gate = min(gates) if gates else None
        sgates = {8 - p.NS2: 1, 20 - p.NS2: 2} if p.staged else {}
        S_DONE = 31
        a(f"s_mov_b32 s{S_DONE}, 0")
        for i in range(NSTG):
            if p.stamps and p.p2stamps and i % 4 == 0: a(f"s_memtime s[{TSL[i//4]}:{TSL[i//4]+1}]")
            if i == (p.ostiter + p.fqiter + 1 if p.latestore else 3) and not H: flag_store('hq', 1)
            if i + 2 in gates or (i == 0):
                pass
            if gates and i == max(first_gate - 2, 0) and first_gate > 0:
                a(f"buffer_load_dword v19, v17, {WSR}, 0 offen sc1"); vm.issue('g')
            if i in gates:
                lb = a.newlabel("L_gate")
                a(f"s_cmp_eq_u32 s{S_DONE}, 1\ns_cbranch_scc1 {lb}")
                if i != first_gate or first_gate == 0: a(f"buffer_load_dword v19, v17, {WSR}, 0 offen sc1\ns_waitcnt vmcnt(0)")
                else: a("s_waitcnt vmcnt(0)")
                need_mask(gates[i])
                a_q = list(vm.q); vm.q = []
                spin(17, 18, 19, 'none', 4, WSR)
                a(f"""v_cmp_le_u32 vcc, 1, v19
                s_nop 4
                s_and_b32 s{S_T0}, vcc_lo, 0xff
                s_cmp_eq_u32 s{S_T0}, 0xff
                s_cselect_b32 s{S_DONE}, 1, 0""")
                a.label(lb)
            if i + 3 in sgates:
                st_setup(sgates[i + 3])
                a(f"buffer_load_dword v19, v17, {WSR}, 0 offen sc1"); vm.issue('sg')
            if i in sgates:
                a("s_waitcnt vmcnt(0)"); vm.q = []
                spin(17, 18, 19, 'none', 4, WSR)
            if p.rlmode == 'split':
                qf = relayout_order(p)[1]
                gi = max(qf - p.NS2, 0)
                if p.fb2dense:
                    ldi = f"buffer_load_dwordx2 v[50:51], v48, {WSR}, 0 offen sc1"
                else:
                    ldi = f"buffer_load_dword v50, v48, {WSR}, 0 offen sc1\nbuffer_load_dword v51, v49, {WSR}, 0 offen sc1"
                if i == max(gi - 3, 0) :
                    a(f"""v_lshlrev_b32 v48, {3 if p.fb2dense else 7}, v0
                    v_add_u32 v48, {FL_OFF + 65536 + 16384}, v48
                    v_add_u32 v49, 8192, v48
                    {ldi}""")
                    vm.issue('fb2', 2)
                if i == gi:
                    lp = a.newlabel("L_fb2"); lk = a.newlabel("L_fb2ok")
                    a("s_waitcnt vmcnt(0)"); vm.q = []
                    a(f"s_mov_b32 s{S_CNT}, 0")
                    a.label(lp)
                    a(f"""v_min_u32 v50, v50, v51
                    v_cmp_le_u32 vcc, 1, v50
                    s_nop 4
                    s_cmp_eq_u64 vcc, -1
                    s_cbranch_scc1 {lk}
                    s_add_u32 s{S_CNT}, s{S_CNT}, 1
                    s_cmp_ge_u32 s{S_CNT}, 0x40000
                    s_cbranch_scc1 {lk}
                    s_sleep {p.sleepB}
                    {ldi}
                    s_waitcnt vmcnt(0)
                    s_branch {lp}""")
                    a.label(lk)
            if i == p.qpoll - 1: hq_setup(0)
            if i == p.qpoll:
                a(f"buffer_load_dword v19, v17, {WSR}, 0 offen sc1"); vm.issue('poll3')
            if i == p.qpoll + 2:
                spin(17, 18, 19, 'poll3', 8, WSR)
            a("s_barrier")
        stamp(a, p, 5)
        if p.stamps:
            a(f"""s_waitcnt lgkmcnt(0)
            s_lshl_b32 s{S_T1}, s2, 6
            s_add_u32 s{S_T1}, s{S_T1}, {TS_OFF + (2<<20)}
            v_mov_b32 v12, 0""")
            for i in range(10):
                a(f"v_mov_b32 v8, s{TSL[i]}\nbuffer_store_dword v8, v12, {WSR}, s{S_T1} offen offset:{4*i}\ns_nop 1")
            a(f"v_mov_b32 v8, s{S_TSA}\nbuffer_store_dword v8, v12, {WSR}, s{S_T1} offen offset:40\ns_nop 1")
            a(f"v_mov_b32 v8, s{S_TSA+4}\nbuffer_store_dword v8, v12, {WSR}, s{S_T1} offen offset:44\ns_nop 1")
            a(f"v_mov_b32 v8, s12\nbuffer_store_dword v8, v12, {WSR}, s{S_T1} offen offset:48\ns_nop 1")
            a(f"v_mov_b32 v8, s14\nbuffer_store_dword v8, v12, {WSR}, s{S_T1} offen offset:52\ns_nop 1")
        write_stamps(a, p, 7, 0)
        a("s_endpgm")

K2_LDS = 39; K2_STG = 41
K2_OFF = 62
K2_STR = 68
K2_SRD_O = 12
NSTG = 37
def stage_of(p, role, i):
    if p.swapq and role == 'Q':
        i = (i ^ 1) if i < 26 else (i if i == 26 else ((i - 27) ^ 1) + 27)
        return 10 + i if i < 27 else i - 27
    if not p.twogroup or role == 'H': return 10 + i if i < 27 else i - 27
    if i < 14: return 23 + i
    if i < 27: return i - 4
    if i < 32: return i - 22
    return i - 32
def slices_of(p, role, i):
    st = stage_of(p, role, i)
    if st < 10: return set()
    return {(2*st - 20)//7, (2*st + 1 - 20)//7}
def relayout_order(p):
    cov = (128*p.rlNE)//10
    if not p.twogroup:
        return [(j + 20) % 74 for j in range(74)], cov//2
    P_ = cov // 4
    ks = list(range(20, 20 + 2*P_)) + list(range(46, 46 + 2*P_)) + list(range(20 + 2*P_, 46)) + list(range(46 + 2*P_, 74)) + list(range(20))
    assert sorted(ks) == list(range(74))
    return ks, P_
def p2_producer(a, p):
    a.label("L2_p")
    if p.prioP2 is not None: a(f"s_setprio {p.prioP2}")
    sc = p.p2flags
    srd(a, S_SRD_WS, 70, 71, 1 << 28)
    a(f"""v_lshlrev_b32 v8, 4, v0
    s_sub_u32 s{S_T5}, s{S_WAVE}, 4
    s_mul_i32 s{S_T3}, s{S_RT2}, {74*4096}
    s_add_u32 s{S_T3}, s{S_T3}, {HF_OFF}
    s_mul_i32 s{S_T4}, s{S_CT2}, {74*5120}
    s_add_u32 s{S_T4}, s{S_T4}, {BF_OFF - 8192}
    s_mul_i32 s{S_T5}, s{S_T5}, 6""")
    for n in range(6):
        a(f"""s_add_u32 s{S_T0}, s{S_T5}, {n}
        s_lshl_b32 s{S_T1}, s{S_T0}, 10
        s_cmp_lt_u32 s{S_T0}, 8
        s_cselect_b32 s{K2_OFF+n}, s{S_T3}, s{S_T4}
        s_movk_i32 s{S_T2}, 0x2800
        s_cselect_b32 s{K2_STR+n}, 0x2000, s{S_T2}
        s_cselect_b32 s{74+n}, 1, 0
        s_add_u32 s{K2_OFF+n}, s{K2_OFF+n}, s{S_T1}""")
    a(f"""s_lshl_b32 s{S_T5}, s{S_T5}, 10
    s_add_u32 s{S_T4}, s{S_T5}, {p.NS2*p.SLOT}""")
    q = p.twogroup
    a(f"""s_cmp_eq_u32 s{S_ROLE}, 0
    s_cselect_b32 s80, {23 if q else 10}, 10
    s_cselect_b32 s81, {14 if q else 27}, 27
    s_cselect_b32 s82, {-4 if q else 10}, 10
    s_cselect_b32 s83, {-22 if q else -27}, -27
    s_cselect_b32 s60, {-32 if q else -27}, -27""".replace("-22, -27", "-22, s61").replace("-32, -27", "-32, s61").replace("-27, -27", "s61, s61").replace("s_cmp_eq_u32", "s_mov_b32 s61, -27\ns_cmp_eq_u32"))
    a(f"s_cmp_eq_u32 s{S_ROLE}, 0\ns_cselect_b32 s57, {1 if p.swapq else 0}, 0")
    def pro(kind):
        for i in range(p.NS2 - 1):
            for n in range(6):
                lb = a.newlabel("L2_pk")
                a(f"""s_cmp_eq_u32 s{74+n}, {1 if kind == 'A' else 0}
                s_cbranch_scc0 {lb}
                {f's_xor_b32 s{S_T2}, s57, {i}' if p.swapq else f's_mov_b32 s{S_T2}, {i}'}
                s_add_u32 s{S_T2}, s80, s{S_T2}
                s_mul_i32 s{S_T2}, s{S_T2}, s{K2_STR+n}
                s_add_u32 s{S_T2}, s{S_T2}, s{K2_OFF+n}
                s_add_u32 m0, s{S_T5}, {i*p.SLOT + n*1024}
                s_nop 0
                buffer_load_dwordx4 v8, {WSR}, s{S_T2} offen {sc} lds""")
                a.label(lb)
    a("s_barrier")
    a(f"""s_cmp_eq_u32 s{S_ROLE}, 0
    s_cselect_b32 s{S_T0}, {FLG(p, 'Q')}, s{S_NPRE}
    v_mov_b32 v9, s{S_T0}""")
    def wait_flag(v):
        lp = a.newlabel("L2_fl"); lk = a.newlabel("L2_flok")
        a(f"s_mov_b32 s{S_CNT}, 0")
        a.label(lp)
        a(f"""ds_read_b32 v10, v9
        s_waitcnt lgkmcnt(0)
        v_readfirstlane_b32 s{S_T0}, v10
        s_cmp_ge_u32 s{S_T0}, {v}
        s_cbranch_scc1 {lk}
        s_add_u32 s{S_CNT}, s{S_CNT}, 1
        s_cmp_ge_u32 s{S_CNT}, 0x400000
        s_cbranch_scc1 {lk}
        s_sleep {p.lsleep}
        s_branch {lp}""")
        a.label(lk)
    if p.fbmode == 'tail17':
        lq = a.newlabel("L2_q"); lj = a.newlabel("L2_j")
        a(f"s_cmp_eq_u32 s{S_ROLE}, 0\ns_cbranch_scc0 {lq}\ns_barrier")
        a.label(lq)
        wait_flag(1)
        pro('B')
        stamp(a, p, 1)
        a(f"s_cmp_eq_u32 s{S_ROLE}, 0\ns_cbranch_scc1 {lj}\ns_barrier")
        a.label(lj)
    else:
        a("s_barrier")
        wait_flag(1)
        pro('B')
    a(f"""s_mul_i32 s{S_T3}, s{S_RT2}, {74*4096}
    s_add_u32 s{S_T3}, s{S_T3}, {HF_OFF}
    s_lshl_b32 s{S_T1}, s80, 13
    s_add_u32 s{S_T3}, s{S_T3}, s{S_T1}""")
    if p.swapq:
        a(f"""s_lshl_b32 s{S_T1}, s57, 13
        s_add_u32 s59, s{S_T3}, s{S_T1}
        s_sub_u32 s56, s{S_T3}, s{S_T1}""")
    wait_flag(2)
    stamp(a, p, 5)
    pieces = [(pos, i) for pos in range(p.NS2 - 1) for i in range(8)]
    lend = a.newlabel("L2_aend")
    for w3 in range(3):
        ln = a.newlabel("L2_aw")
        if w3 < 2: a(f"s_cmp_eq_u32 s{S_WAVE}, {4 + w3}\ns_cbranch_scc0 {ln}")
        mine = [pc for k, pc in enumerate(pieces) if k % 3 == w3]
        for pos, i in mine:
            if p.swapq:
                a(f"""s_add_u32 s{S_T2}, s{59 if pos % 2 == 0 else 56}, {pos*8192 + i*1024}
                s_mov_b32 m0, {pos*p.SLOT + i*1024}
                s_nop 0
                buffer_load_dwordx4 v8, {WSR}, s{S_T2} offen {sc} lds""")
                continue
            a(f"""s_add_u32 s{S_T2}, s{S_T3}, {pos*8192 + i*1024}
            s_add_u32 m0, 0, {pos*p.SLOT + i*1024}
            s_nop 0
            buffer_load_dwordx4 v8, {WSR}, s{S_T2} offen {sc} lds""".replace("s_add_u32 m0, 0, ", "s_mov_b32 m0, "))
        late = sum(1 for pos, i in mine if pos >= 2)
        if w3 == 0: stamp(a, p, 6)
        a(f"s_waitcnt vmcnt({late})")
        if w3 < 2:
            a(f"s_branch {lend}")
            a.label(ln)
    a.label(lend)
    a("s_barrier")
    stamp(a, p, 3)
    a(f"""s_mov_b32 s{K2_STG}, {p.NS2 - 1}
    s_add_u32 s{K2_LDS}, s{S_T5}, {(p.NS2 - 1)*p.SLOT}
    s_mov_b32 s{S_CNT}, 0
    s_mov_b32 s{S_T3}, {OOB}""")
    a.label("L2_p_loop")
    if p.swapq:
        a(f"""s_xor_b32 s{S_T1}, s{K2_STG}, s57
        s_sub_u32 s{S_T2}, s{K2_STG}, 27
        s_xor_b32 s{S_T2}, s{S_T2}, s57
        s_add_u32 s{S_T2}, s{S_T2}, 27
        s_cmp_ge_u32 s{K2_STG}, 27
        s_cselect_b32 s{S_T1}, s{S_T2}, s{S_T1}
        s_cmp_eq_u32 s{K2_STG}, 26
        s_cselect_b32 s58, s{K2_STG}, s{S_T1}""")
    IDX = 58 if p.swapq else K2_STG
    a(f"""s_cmp_lt_u32 s{IDX}, 32
    s_cselect_b32 s{S_T0}, s83, s60
    s_cmp_lt_u32 s{IDX}, 27
    s_cselect_b32 s{S_T0}, s82, s{S_T0}
    s_cmp_lt_u32 s{IDX}, s81
    s_cselect_b32 s{S_T0}, s80, s{S_T0}
    s_add_u32 s{S_T0}, s{S_T0}, s{IDX}
    s_cmp_ge_u32 s{K2_STG}, {NSTG}
    s_cselect_b32 s{S_T1}, s{S_T3}, 0""")
    for n in range(6):
        a(f"""s_mul_i32 s{S_T2}, s{S_T0}, s{K2_STR+n}
        s_add_u32 s{S_T2}, s{S_T2}, s{K2_OFF+n}
        s_add_u32 s{S_T2}, s{S_T2}, s{S_T1}
        s_add_u32 m0, s{K2_LDS}, {n*1024}
        s_nop 0
        buffer_load_dwordx4 v8, {WSR}, s{S_T2} offen {sc} lds""")
    a(f"""s_add_u32 s{K2_STG}, s{K2_STG}, 1
    s_add_u32 s{K2_LDS}, s{K2_LDS}, {p.SLOT}
    s_cmp_eq_u32 s{K2_LDS}, s{S_T4}
    s_cselect_b32 s{K2_LDS}, s{S_T5}, s{K2_LDS}
    s_cmp_lt_u32 s{S_CNT}, 1
    s_cbranch_scc0 L2_p_w
    s_waitcnt vmcnt(6)
L2_p_w:
    s_waitcnt vmcnt({(p.NS2 - 3)*6})
    s_barrier
    s_add_u32 s{S_CNT}, s{S_CNT}, 1
    s_cmp_lt_u32 s{S_CNT}, {NSTG}
    s_cbranch_scc1 L2_p_loop""")
    stamp(a, p, 4)
    write_stamps(a, p, 7, 0)
    a("s_endpgm")

def EPI2(p): return P2RING(p)

def p2_consumer(a, p):
    a.label("L2_c")
    if p.prioC2 is not None: a(f"s_setprio {p.prioC2}")
    ACC = 16; FR = 40; NFR = 12; D = p.D2; XR = 96
    VA, VB = 1, 6
    OS_ = f"s[{K2_SRD_O}:{K2_SRD_O+3}]"
    srd(a, S_SRD_X, 4, 5, 2048*1280)
    srd(a, K2_SRD_O, S_OUTP, S_OUTP+1, 2048*1280)
    a(f"""v_mul_u32_u24 v2, 6554, v0
    v_lshrrev_b32 v2, 16, v2
    v_mul_u32_u24 v3, 10, v2
    v_sub_u32 v3, v0, v3
    s_lshl_b32 s{S_T0}, s{S_RT2}, 6
    s_lshl_b32 s{S_T1}, s{S_WAVE}, 4
    s_add_u32 s{S_T0}, s{S_T0}, s{S_T1}
    s_mul_i32 s{S_T0}, s{S_T0}, 1280
    s_mul_i32 s{S_T1}, s{S_CT2}, 160
    s_add_u32 s{S_T0}, s{S_T0}, s{S_T1}
    v_mul_u32_u24 v4, 1280, v2
    v_lshl_add_u32 v4, v3, 4, v4
    v_add_u32 v4, s{S_T0}, v4
    v_mov_b32 v5, {OOB}
    v_cmp_gt_u32 vcc, 60, v0
    v_cndmask_b32 v10, v5, v4, vcc
    v_add_u32 v4, {6*1280}, v4
    v_cndmask_b32 v11, v5, v4, vcc
    v_add_u32 v4, {6*1280}, v4
    v_cmp_gt_u32 vcc, 40, v0
    v_cndmask_b32 v12, v5, v4, vcc
    s_mul_i32 s{S_T5}, s{S_WAVE}, 5376
    s_add_u32 s{S_T5}, s{S_T5}, {EPI2(p)}
    v_mul_u32_u24 v13, 336, v2
    v_lshl_add_u32 v13, v3, 5, v13
    v_add_u32 v13, s{S_T5}, v13
    v_lshlrev_b32 v{VB}, 4, v0
    s_lshl_b32 s{S_T0}, s{S_WAVE}, 10
    v_add_u32 v{VA}, s{S_T0}, v{VB}
    s_mov_b32 s{S_WSLOT}, 0
    s_mov_b32 s{S_SLOTC}, {p.SLOT}
    s_mov_b32 s{S_NEGW}, {-(p.NS2-1)*p.SLOT & 0xffffffff}
    s_mov_b32 s{S_CNT}, 0
    s_cmp_eq_u32 s{S_ROLE}, 0
    s_cbranch_scc1 L2_c_q
    {'' if p.staged else 's_waitcnt vmcnt(0)'}
    s_barrier""")
    a.label("L2_c_q")
    for r in range(ACC, ACC+20): a(f"v_mov_b32 v{r}, 0")
    def resid(): a(f"""buffer_load_dwordx4 v[{XR}:{XR+3}], v10, {XS}, 0 offen
    buffer_load_dwordx4 v[{XR+4}:{XR+7}], v11, {XS}, 0 offen
    buffer_load_dwordx4 v[{XR+8}:{XR+11}], v12, {XS}, 0 offen""")
    if not p.residiter: resid()
    a("s_barrier")
    if p.latestore and p.ostiter == 0:
        lh = a.newlabel("L2_nost")
        a(f"s_cmp_eq_u32 s{S_ROLE}, 0\ns_cbranch_scc0 {lh}")
        o_stores(a, p, S_OST)
        a.label(lh)
    trk = LgkmTracker()
    def rd(f, tag):
        d = FR + 4*f
        h, q = divmod(f, 6)
        if p.p2noread and q > 1: return
        if q == 0: a(f"ds_read_b128 v[{d}:{d+3}], v{VA} offset:{h*4096}")
        else: a(f"ds_read_b128 v[{d}:{d+3}], v{VB} offset:{8192 + (h*5 + q - 1)*1024}")
        trk.issue(tag)
    for f in range(D): rd(f, ('f', 0, f))
    a.label("L2_c_loop")
    start_q = list(trk.q)
    nread = D
    for h in range(2):
        for i in range(5):
            fa = h*6; fb = h*6 + 1 + i
            trk.wait_for(a, {('f', 0, fa), ('f', 0, fb)})
            a(f"v_mfma_f32_16x16x32_bf16 v[{ACC+4*i}:{ACC+4*i+3}], v[{FR+4*fb}:{FR+4*fb+3}], v[{FR+4*fa}:{FR+4*fa+3}], v[{ACC+4*i}:{ACC+4*i+3}]")
            cnt = 2 if i == 0 else 1
            for _ in range(cnt):
                if nread == NFR:
                    a(f"""s_add_u32 s{S_WSLOT}, s{S_WSLOT}, 1
                    s_cmp_eq_u32 s{S_WSLOT}, {p.NS2}
                    s_cselect_b32 s{S_WDELTA}, s{S_NEGW}, s{S_SLOTC}
                    s_cselect_b32 s{S_WSLOT}, 0, s{S_WSLOT}
                    v_add_u32 v{VA}, s{S_WDELTA}, v{VA}
                    v_add_u32 v{VB}, s{S_WDELTA}, v{VB}""")
                if nread < NFR: rd(nread, ('f', 0, nread))
                else: rd(nread - NFR, ('f', 1, nread - NFR))
                nread += 1
    assert nread == NFR + D
    lw = a.newlabel("L2_nw")
    drain_it = (p.ostiter + p.fqiter - 1) if p.latestore else 1
    a(f"s_cmp_eq_u32 s{S_CNT}, {drain_it}\ns_cbranch_scc0 {lw}\ns_waitcnt vmcnt(0)")
    a.label(lw)
    if p.latestore and p.ostiter > 0:
        a(f"s_cmp_eq_u32 s{S_CNT}, {p.ostiter - 1}\ns_cbranch_scc1 L2_hook_st")
        a.label("L2_hook_st_back")
    if p.residiter:
        a(f"s_cmp_eq_u32 s{S_CNT}, {p.residiter}\ns_cbranch_scc1 L2_hook_rs")
        a.label("L2_hook_rs_back")
    a("s_barrier")
    endq = [('f', 0, t[2]) for t in trk.q]
    assert endq == start_q[len(start_q)-len(endq):], (endq, start_q)
    a(f"""s_add_u32 s{S_CNT}, s{S_CNT}, 1
    s_cmp_lt_u32 s{S_CNT}, {NSTG}
    s_cbranch_scc1 L2_c_loop
    s_waitcnt lgkmcnt(0)""")
    a(f"""v_and_b32 v2, 15, v0
    v_lshrrev_b32 v3, 4, v0
    v_mul_u32_u24 v2, 336, v2
    v_lshl_add_u32 v2, v3, 4, v2
    v_add_u32 v2, s{S_T5}, v2
    s_nop 7""")
    for i in range(5):
        a(f"ds_write_b128 v2, v[{ACC+4*i}:{ACC+4*i+3}] offset:{i*64}")
    a("s_waitcnt lgkmcnt(0)")
    T = 40
    for k in range(3):
        a(f"ds_read_b128 v[{T+8*k}:{T+8*k+3}], v13 offset:{k*6*336}")
        a(f"ds_read_b128 v[{T+8*k+4}:{T+8*k+7}], v13 offset:{k*6*336+16}")
    a("s_waitcnt vmcnt(0) lgkmcnt(0)")
    for k in range(3):
        for q in range(4):
            xr = XR + 4*k + q
            a(f"""v_lshlrev_b32 v4, 16, v{xr}
            v_and_b32 v5, 0xffff0000, v{xr}
            v_add_f32 v4, v4, v{T+8*k+2*q}
            v_add_f32 v5, v5, v{T+8*k+2*q+1}
            v_cvt_pk_bf16_f32 v{xr}, v4, v5""")
        a(f"buffer_store_dwordx4 v[{XR+4*k}:{XR+4*k+3}], v{10+k}, {OS_}, 0 offen {p.outflags}")
    if p.stamps:
        write_stamps(a, p, 7, 0)
    a("s_endpgm")
    if p.latestore and p.ostiter > 0:
        a.label("L2_hook_st")
        a(f"s_cmp_eq_u32 s{S_ROLE}, 0\ns_cbranch_scc0 L2_hook_st_back")
        o_stores(a, p, S_OST)
        a("s_branch L2_hook_st_back")
    if p.residiter:
        a.label("L2_hook_rs")
        resid()
        a("s_branch L2_hook_rs_back")

def gen_k1(p):
    a = Asm()
    a.label("L_text_begin")
    k1_entry(a, p)
    producer(a, p)
    p2_producer(a, p)
    utility(a, p)
    for role in ('Q', 'H'):
        consumer_entry(a, p, role)
        for w in range(4): consumer_loop(a, p, role, w)
        (epilogue_qkv if role == 'Q' else epilogue_h)(a, p)
    p2_consumer(a, p)
    a.label("L1_exit")
    lines, n = hazard.fix(a.lines)
    return "\n".join(lines) + "\n", n

K1NAME = "parallel_sum__sliding_local_dilated__dense_activation_relu__prompt_kernel"
def kdesc(name):
    return f""".amdhsa_kernel {name}
  .amdhsa_next_free_vgpr 256
  .amdhsa_next_free_sgpr 102
  .amdhsa_accum_offset 256
  .amdhsa_group_segment_fixed_size 0
  .amdhsa_kernarg_size 72
  .amdhsa_user_sgpr_count 2
  .amdhsa_user_sgpr_kernarg_segment_ptr 1
  .amdhsa_system_sgpr_workgroup_id_x 1
  .amdhsa_float_denorm_mode_32 3
.end_amdhsa_kernel
"""
HEADER = """; Kernarg layout for this problem (72 bytes, ptrs only, base s[0:1]):
;   offset  40: d_in[5] B_w2  shape=(1728, 640) dtype=bfloat16 strides=(1280, 2) contiguous=True
;   offset  64: d_ws      268435456 bytes workspace
"""
DOC = """; ---------------------------------------------------------------------------------------------
;   mean/rstd are computed once per token (8 rows per workgroup) and exchanged through d_ws (counter in d_debug).
;   role H (128 WGs): h = relu(LN(x).w1) as MFMA fragments; its utility wave re-lays [wo; w2] out in fragment order.
; Phase 2 (K = 2368): out = x + [o | h].[wo; w2], 64x80 tile per workgroup, operands streamed by LDS-DMA.
; Hand-offs between workgroups: write-through stores, s_waitcnt, then a flag in d_ws (cleared by its owner at start;
; ---------------------------------------------------------------------------------------------
"""
def gen_file(p):
    t1, n1 = gen_k1(p)
    lds = 163840
    s = HEADER
    s += f"; @launch grid=(256,1,1) block=(512,1,1) lds={lds}\n"
    s += '.amdgcn_target "amdgcn-amd-amdhsa--gfx950"\n.text\n' + DOC
    s += f".globl {K1NAME}\n.p2align 8\n.type {K1NAME},@function\n{K1NAME}:\n{t1}  s_endpgm\n"
    s += "L_text_end:\n"
    s += '.section .rodata,"a"\n.p2align 6\n' + kdesc(K1NAME)
    return s
```

```python
import hazard
from hazard import I
def cost(c):
    if c.cls == 'mfma': return 4
    if c.cls == 'perm': return 8
    if c.cls == 'valu' and getattr(c, 'trans', False): return 8
    return 4
def lat(p, c):
    n = hazard.need(p, c)
    base = cost(p)
    if p.cls == 'mfma':
        if c.cls == 'mfma' and p.w == c.srcC and not (p.w & c.srcAB): return 16
        return max(4 + 4*n, 40)
    if p.cls in ('valu', 'perm'):
        l = base + (4 if getattr(p, 'trans', False) else 0)
        if p.op.startswith('v_pk_') or p.op.startswith('v_cvt_pk'): l = max(l, 8)
        return max(l, base + 4*n)
    return base + 4*n
def schedule(lines):
    ins = []
    for l in lines:
        t = l.split(';')[0].strip()
        if not t: continue
        assert not t.endswith(':') and not t.startswith('s_cbranch') and not t.startswith('s_branch'), t
        c = I(t); c.text = l; ins.append(c)
    n = len(ins)
    SCCW = ('s_add_u32','s_sub_u32','s_cmp','s_lshl_b32','s_lshr_b32','s_and_b32','s_or_b32','s_mul_i32x','s_max','s_min','s_not','s_bitcmp','s_addc','s_bfe')
    dsq = []
    for i, c in enumerate(ins):
        c.r = set(c.r); c.w = set(c.w)
        op = c.op
        if c.cls == 'salu':
            if any(op.startswith(x) for x in SCCW): c.w.add(('scc', 0))
            if op.startswith('s_cselect') or op.startswith('s_addc'): c.r.add(('scc', 0))
        if c.cls in ('valu', 'perm', 'mfma', 'ds', 'vmem'): c.r.add(('exec', 0))
        if c.cls == 'ds' or op == 's_waitcnt' or op == 's_barrier' or c.cls == 'vmem' or op == 's_memtime':
            c.r.add(('mem', 0)); c.w.add(('mem', 0))
        if c.cls == 'ds':
            dsq.append(c)
        if op == 's_waitcnt' and 'lgkmcnt' in c.rest:
            import re
            k = int(re.search(r'lgkmcnt\((\d+)\)', c.rest).group(1))
            done = dsq[:len(dsq) - k] if k <= len(dsq) else []
            for d in done:
                c.w |= {x for x in d.w if x[0] == 'v'}
                c.r |= {x for x in d.r if x[0] == 'v' and not d.w}
            dsq = dsq[len(dsq) - k:] if k <= len(dsq) else dsq
        if op == 's_waitcnt' and 'vmcnt' in c.rest:
            c.w.add(('vm', 0))
    preds = [[] for _ in range(n)]; succs = [[] for _ in range(n)]
    lastw = {}; readers = {}
    for i, c in enumerate(ins):
        deps = {}
        for r in c.r:
            if r in lastw: deps[lastw[r]] = 'raw'
        for r in c.w:
            if r in lastw: deps.setdefault(lastw[r], 'waw')
            for j in readers.get(r, []):
                if j != i: deps.setdefault(j, 'war')
        for j, k in deps.items():
            if k == 'raw':
                l = lat(ins[j], c)
                if ins[j].cls == 'ds' and c.op == 's_waitcnt': l = 140
                if ins[j].cls == 'ds' and c.cls == 'ds': l = 8
            else:
                l = 4 + 4*hazard.need(ins[j], c)
            preds[i].append((j, l)); succs[j].append((i, l))
        for r in c.r: readers.setdefault(r, []).append(i)
        for r in c.w:
            lastw[r] = i; readers[r] = []
    prio = [0]*n
    for i in range(n-1, -1, -1):
        prio[i] = cost(ins[i]) + max([l + prio[j] for j, l in succs[i]], default=0)
    npred = [len(p) for p in preds]
    ready = [i for i in range(n) if npred[i] == 0]
    earliest = [0]*n
    t = 0; mf = -100
    out = []
    while ready:
        def st(i):
            e = max(t, earliest[i])
            if ins[i].cls == 'mfma': e = max(e, mf + 16)
            return e
        best = min(ready, key=lambda i: (max(st(i) - t, 0) > 0, st(i) if st(i) > t else 0, -prio[i], i))
        s = st(best)
        t = s + cost(ins[best])
        if ins[best].cls == 'mfma': mf = s
        out.append(ins[best].text)
        ready.remove(best)
        for j, l in succs[best]:
            earliest[j] = max(earliest[j], s + l)
            npred[j] -= 1
            if npred[j] == 0: ready.append(j)
    assert len(out) == n
    return out, t
```

```python
import sys
sys.path.insert(0,'gen'); sys.path.insert(0,'dev')
from kgen6 import *
from asmb import build
def mk(name, **kw):
    p = P(); p.rot2 = 0; p.ramp = [('x',0),('W',0),('W',1),('W',2),('x',1)]
    for k, v in kw.items(): setattr(p, k, v)
    t = gen_file(p)
    open(f'dev/{name}.s', 'w').write(t)
    build(t, f'dev/{name}.co', K1NAME)
    print(name, len(t))
if __name__ == '__main__':
    for name, kw in eval(sys.argv[1]): mk(name, **kw)
```

```python
from asmlib import *
import hazard, struct
import sched

class P:
    NW = 5; NX = 3; SLOT = 18432; D = 5
    rot = True; WD = 5; rotC = [0, 1, 2, 3]
    maxw = 2; maxx = 2; pollstep = 15; qpoll = 20; fbstep = 9; rlmode = 'split'; rlNE = 2; fbmode = 'tail17'; predelayQ = 12; predelayH = 0; rlstep = 6; ppdepth = 0; ppgap = 4; sleepA = 6; sleepB = 6; lsleep = 1
    ramp = [('x', 0), ('W', 0), ('W', 1)]
    rot2 = 8
    NS2 = 5; D2 = 6
    stamps = False
    stflags = "sc0 sc1"
    dry = False
    pf = False
    PFD = 4
    pf2 = False
    codepf = True
    pfhalf = False
    p2flags = 'sc1'
    latestore = True
    twogroup = False
    tlbtouch = False
    dbar = False
    pairwait = True
    ppQ = False
    fb2dense = True
    p2stamps = False
    hprio = 0
    wflags = False
    swapq = False
    prioC = 0
    prioP = 0
    prioU = 0
    prioC2 = None
    prioP2 = None
    staged = False
    windows = None
    hdelay = 0
    outflags = ''
    skipx2 = False
    ostiter = 0
    residiter = 0
    rlrole = 'H'
    fqiter = 4
    p2noread = False
    nosched = False
    nodma = False
    nocons = False
    noutil = False
    xsplit = True

XPITCH = 1280; WQ_PITCH = 3840; W1_PITCH = 3456
OOB = 0x40000000
HF_OFF = 0; BF_OFF = 16 << 20; ST_OFF = 24 << 20; FL_OFF = 25 << 20; TS_OFF = 128 << 20
EPS = 1e-5
def f2u(x): return struct.unpack('<I', struct.pack('<f', x))[0]

S_SRD_X = 8; S_SRD_W = 12; S_SRD_WS = 16
S_W1P = 20
S_WAVE = 24; S_RT = 25; S_COL = 26; S_T0 = 27; S_T1 = 28; S_T2 = 29; S_CNT = 30
S_WSLOT = 31; S_WDELTA = 32; S_XSLOT = 33; S_XDELTA = 34; S_THETA = 35; S_D0 = 36
S_WOFF = 37; S_XOFF = 38; S_WLDS = 39; S_XLDS = 40; S_STG = 41
S_MASK = 42
S_DRY = 44; S_LI = 45; S_CC = 46; S_TT = 47
S_T3 = 48; S_T4 = 49; S_IDX = 50; S_KSX = 51
S_SLOTC = 52; S_NEGW = 53; S_NEGX = 54; S_T5 = 55
S_SRD_DBG = 56
S_PC = 60
S_WOP = 62; S_W2P = 64
S_MP = 66; S_SC0 = 68; S_SC2 = 70; S_GE = 72; S_LE = 78
S_SRD_R = 84
S_SRD_L = 76
S_TSA = 88
S_ROLE = 3
def GE(h): return f"s[{S_GE+2*(h-1)}:{S_GE+2*(h-1)+1}]"
def LE(h): return f"s[{S_LE+2*h}:{S_LE+2*h+1}]"
XS = f"s[{S_SRD_X}:{S_SRD_X+3}]"; WSR = f"s[{S_SRD_WS}:{S_SRD_WS+3}]"; WW = f"s[{S_SRD_W}:{S_SRD_W+3}]"; DBG = f"s[{S_SRD_DBG}:{S_SRD_DBG+3}]"

SX = 18432
def SW(role): return 18432 if role == 'Q' else 15360
def XBASE(p, role): return p.NW * SW(role)
def RINGEND(p, role): return XBASE(p, role) + p.NX * SX
def RLB(p): return RINGEND(p, 'H')
def RLBUF(p, n):
    return RINGEND(p, 'H') + n*4096
def STAT(p, role): return RINGEND(p, role) + (24576 if role == 'H' else 0)
def CARE(p, role): return STAT(p, role) + 1536
def P2RING(p): return p.NS2 * p.SLOT
def EXB(p): return P2RING(p)
def RLADDR(p, role, n):
    if role == 'H': return RLB(p) + n*4096
    if n < p.rlNE: return FLG(p, 'Q') + 256 + n*4096
    return XBASE(p, 'Q') + 2*SX + (n - p.rlNE)*4096
OFFR = [0, 8, 16, 24, 32, 40, 47]
FL2_OFF = (25 << 20) + 131072
S_SLOTX = 50
S_OUTP = 84
S_RT2 = 86; S_CT2 = 87
S_NPRE = 44
def FLG(p, role): return CARE(p, role) + 1280

def mask64(a, s, val):
    a(f"s_mov_b32 s{s}, {val & 0xffffffff:#x}")
    a(f"s_mov_b32 s{s+1}, {(val >> 32) & 0xffffffff:#x}")

def stamp(a, p, idx):
    if p.stamps:
        if idx == 0: a("s_memrealtime s[74:75]\ns_waitcnt lgkmcnt(0)\ns_mov_b32 s102, s74".replace("s102", "s1"))
        a(f"s_memtime s[{S_TSA+2*idx}:{S_TSA+2*idx+1}]")
def write_stamps(a, p, n, kernel):
    if not p.stamps: return
    a("s_waitcnt vmcnt(0)\ns_memrealtime s[74:75]\ns_waitcnt lgkmcnt(0)")
    a(f"""s_lshl_b32 s{S_T1}, s2, 3
    s_add_u32 s{S_T1}, s{S_T1}, s{S_WAVE}
    s_lshl_b32 s{S_T1}, s{S_T1}, 6
    s_add_u32 s{S_T1}, s{S_T1}, {TS_OFF + kernel*(1<<20)}
    v_mov_b32 v12, 0""")
    for i in range(n):
        a(f"v_mov_b32 v{8+(i&3)}, s{S_TSA+2*i}")
        if (i & 3) == 3 or i == n-1:
            a(f"buffer_store_dwordx4 v[8:11], v12, {WSR}, s{S_T1} offen offset:{(i//4)*16}")
            a("s_nop 1")
    a(f"""v_mov_b32 v8, s1
    v_mov_b32 v9, s74
    buffer_store_dwordx2 v[8:9], v12, {WSR}, s{S_T1} offen offset:32
    s_waitcnt vmcnt(0)""")

def srd(a, s, lo, hi, size):
    a(f"""s_mov_b32 s{s}, s{lo}
    s_and_b32 s{s+1}, s{hi}, 0xffff
    s_mov_b32 s{s+2}, {size}
    s_mov_b32 s{s+3}, 0x20000""")

S_RAW = 41
def WL(p): return p.windows if p.windows else [p.WD]*(10//p.WD) + ([10 % p.WD] if 10 % p.WD else [])
S_DT = 72
def k1_entry(a, p):
    a(f"""s_getpc_b64 s[{S_PC}:{S_PC+1}]
    s_cmp_ge_u32 s2, 256
    s_cbranch_scc1 L1_exit
    s_load_dwordx4 s[4:7], s[0:1], 0
    s_load_dwordx2 s[{S_WOP}:{S_WOP+1}], s[0:1], 16
    s_load_dwordx4 s[{S_W1P}:{S_W1P+3}], s[0:1], 32
    s_load_dwordx4 s[68:71], s[0:1], 56
    s_load_dwordx2 s[{S_OUTP}:{S_OUTP+1}], s[0:1], 48
    v_lshrrev_b32 v1, 6, v0
    v_and_b32 v0, 63, v0
    s_and_b32 s{S_T0}, s2, 7
    s_lshr_b32 s{S_LI}, s2, 3
    v_readfirstlane_b32 s{S_WAVE}, v1
    s_lshr_b32 s{S_ROLE}, s{S_LI}, 4
    s_xor_b32 s{S_ROLE}, s{S_ROLE}, 1
    s_bfe_u32 s{S_RT2}, s{S_LI}, 0x30000          ; rt_l (0..7)
    s_bfe_u32 s{S_T1}, s{S_LI}, 0x10003           ; bit3
    s_lshl_b32 s{S_CT2}, s{S_T1}, 1
    s_xor_b32 s{S_T2}, s{S_RT2}, s{S_ROLE}
    s_and_b32 s{S_T2}, s{S_T2}, 1
    s_add_u32 s{S_CT2}, s{S_CT2}, s{S_T2}
    s_lshr_b32 s{S_T2}, s{S_T0}, 1
    s_lshl_b32 s{S_T2}, s{S_T2}, 3
    s_add_u32 s{S_RT2}, s{S_RT2}, s{S_T2}
    s_and_b32 s{S_T2}, s{S_T0}, 1
    s_lshl_b32 s{S_T2}, s{S_T2}, 2
    s_add_u32 s{S_CT2}, s{S_CT2}, s{S_T2}
    s_and_b32 s{S_TT}, s{S_T0}, 1
    s_lshr_b32 s{S_CC}, s{S_T0}, 1
    s_bfe_u32 s{S_RT}, s{S_LI}, 0x30000
    s_lshl_b32 s{S_T0}, s{S_CC}, 1
    s_add_u32 s{S_COL}, s{S_T1}, s{S_T0}
    s_lshl_b32 s{S_IDX}, s{S_ROLE}, 3
    s_add_u32 s{S_IDX}, s{S_IDX}, s{S_COL}
    s_lshl_b32 s{S_T2}, s{S_ROLE}, 1
    s_add_u32 s{S_T2}, s{S_T2}, s{S_T1}
    s_lshl_b32 s{S_T2}, s{S_T2}, 2
    s_lshr_b32 s{S_T2}, {sum(v << (4*i) for i, v in enumerate(p.rotC))}, s{S_T2}
    s_and_b32 s{S_T2}, s{S_T2}, 15
    s_add_u32 s{S_D0}, s{S_RT}, s{S_T2}
    s_mov_b32 s{S_RAW}, s{S_D0}
    s_mul_i32 s{S_T2}, s{S_D0}, {(65536 + WL(p)[0] - 1)//WL(p)[0]}
    s_lshr_b32 s{S_T2}, s{S_T2}, 16
    s_mul_i32 s{S_T2}, s{S_T2}, {WL(p)[0]}
    s_sub_u32 s{S_D0}, s{S_D0}, s{S_T2}
    s_lshl_b32 s{S_T2}, s{S_TT}, 3
    s_add_u32 s{S_RT}, s{S_RT}, s{S_T2}
    s_and_b32 s{S_T0}, s{S_COL}, 3
    s_lshl_b32 s{S_T0}, s{S_T0}, 2
    s_lshr_b32 s{S_THETA}, 0x2a6a, s{S_T0}
    s_and_b32 s{S_THETA}, s{S_THETA}, 15
    """)
    for wd in WL(p):
        for v in range(16): assert (v * ((65536 + wd - 1)//wd)) >> 16 == v // wd
    if not p.rot: a(f"s_mov_b32 s{S_D0}, 0")
    a(f"""s_cmp_ge_u32 s{S_WAVE}, 7
    s_cbranch_scc1 L_util
    s_cmp_ge_u32 s{S_WAVE}, 4
    s_cbranch_scc1 L_prod
    s_cmp_eq_u32 s{S_ROLE}, 0
    s_cbranch_scc0 L_cH
    s_branch L_cQ
    """)

def kwait(a, p, need):
    a("s_waitcnt lgkmcnt(0)")
    if 'x' in need: srd(a, S_SRD_X, 4, 5, 2048*1280)
    if 'ws' in need: srd(a, S_SRD_WS, 70, 71, 1 << 28)
    if 'dbg' in need: srd(a, S_SRD_DBG, 68, 69, 256)
    if 'w' in need:
        a(f"""s_cmp_eq_u32 s{S_ROLE}, 0
        s_cselect_b32 s{S_SRD_W}, s6, s{S_W1P}
        s_cselect_b32 s{S_SRD_W+1}, s7, s{S_W1P+1}
        s_mov_b32 s{S_T0}, {640*3456}
        s_cselect_b32 s{S_SRD_W+2}, {640*3840}, s{S_T0}
        s_and_b32 s{S_SRD_W+1}, s{S_SRD_W+1}, 0xffff
        s_mov_b32 s{S_SRD_W+3}, 0x20000""")
    if 'w2' in need:
        a(f"s_mov_b32 s{S_W2P}, s22\ns_mov_b32 s{S_W2P+1}, s23")

class R:
    VW = 1; VXA = 6; VXB = 7
    ACC = 16; HALO = 136; WF = 152; XF = 192
    ST = 232

def halo_frags(role, w):
    if role == 'Q':
        l = [w, 5 + w, 10 + w]
        if w < 3: l.append(4 + 5*w)
        return {f: n for n, f in enumerate(l)}
    return {f: (f - w)//4 for f in range(14) if f % 4 == w}

def consumer_setup(a, p, role):
    qkv = role == 'Q'
    pitch = 576 if qkv else 448
    XB = XBASE(p, role)
    a(f"""v_lshrrev_b32 v2, 4, v0          ; g
    v_bfe_u32 v3, v0, 2, 2            ; r
    v_and_b32 v4, 3, v0               ; c
    v_and_b32 v5, 1, v2               ; f
    v_lshl_add_u32 v6, v2, 3, v3      ; row = 8g + r
    v_mul_u32_u24 v6, {pitch}, v6
    v_lshl_add_u32 v14, v4, 3, v6
    v_lshlrev_b32 v15, 1, v5          ; 2f
    v_and_b32 v3, 15, v0              ; j
    v_lshrrev_b32 v4, 1, v3
    v_xor_b32 v4, v4, v2
    v_lshlrev_b32 v4, 4, v4
    v_lshl_add_u32 v4, v3, 7, v4
    s_lshl_b32 s{S_T0}, s{S_WAVE}, 12           ; w*2 blocks*2048
    s_add_u32 s{S_T0}, s{S_T0}, {XB + (2048 if qkv else 0)}
    v_add_u32 v{R.VXA}, s{S_T0}, v4
    v_xor_b32 v{R.VXB}, 64, v{R.VXA}
    v_add_u32 v8, {XB}, v4
    v_xor_b32 v9, 64, v8
    v_cmp_eq_u32 vcc, 0, v3
    s_not_b64 s[{S_MASK}:{S_MASK+1}], vcc
    """)
    if qkv:
        for st in range(2):
            for q in range(4): a(f"v_mov_b32 v{R.XF + st*12 + 8 + q}, 0x3f803f80")
        for b in range(5):
            a(f"""s_cmp_ge_u32 {2*b}, s{S_THETA}
            s_cselect_b32 s{S_T0}, {2*b+2}, {2*b}
            v_xor_b32 v13, s{S_T0}, v15
            v_lshl_add_u32 v{R.VW+b}, v13, 4, v14""")
    else:
        a(f"v_mov_b32 v13, 0x3f803f80")
        for q in range(4): a(f"v_cndmask_b32 v{R.XF + 8 + q}, 0, v13, vcc")
        a(f"""v_lshl_add_u32 v{R.VW}, v15, 4, v14
        v_lshlrev_b32 v13, 4, v15
        v_sub_u32 v{R.VW+1}, v14, v13""")
    nacc = 120 if qkv else 112
    for r in range(R.ACC, R.ACC + nacc): a(f"v_mov_b32 v{r}, 0")
    for r in range(R.HALO, R.HALO + 16): a(f"v_mov_b32 v{r}, 0")
    a(f"""s_mov_b32 s{S_WSLOT}, 0
    s_mov_b32 s{S_XSLOT}, 0
    s_mov_b32 s{S_SLOTC}, {SW(role)}
    s_mov_b32 s{S_SLOTX}, {SX}
    s_mov_b32 s{S_NEGW}, {-(p.NW-1)*SW(role) & 0xffffffff}
    s_mov_b32 s{S_NEGX}, {-(p.NX-1)*SX & 0xffffffff}
    s_mov_b32 s{S_CNT}, 0""")

def consumer_loop(a, p, role, w):
    qkv = role == 'Q'
    NB = 15 if qkv else 14
    NF = 10 if qkv else 7
    D = p.D
    pitch = 576 if qkv else 448
    second = 4 * pitch
    lab = f"L_c{role}{w}"
    a.label(lab)
    VHA, VHB = 8, 9
    def waddr(f):
        if qkv:
            part, b = divmod(f, 5)
            return R.VW + b, part * 192
        return R.VW + (f & 1), f * 32
    def rw(f, gidx, half):
        va, off = waddr(f)
        dst = R.WF + 4 * (gidx % NF) + 2*half
        return f"ds_read_b64_tr_b16 v[{dst}:{dst+1}], v{va} offset:{off + half*second}"
    def rx(which, st, hsel):
        dst = R.XF + st*12 + 4*which
        if which < 2:
            return [f"ds_read_b128 v[{dst}:{dst+3}], v{R.VXB if hsel else R.VXA} offset:{which*2048}"]
        return [f"s_mov_b64 exec, s[{S_MASK}:{S_MASK+1}]", f"ds_read_b128 v[{dst}:{dst+3}], v{VHB if hsel else VHA} offset:0", "s_mov_b64 exec, -1"]
    nx = 3 if qkv else 2
    halo_idx = halo_frags(role, w)
    def mfma_list(f, gidx, st):
        res = []
        wf = R.WF + 4 * (gidx % NF)
        W = f"v[{wf}:{wf+3}]"
        part, b = divmod(f, 5) if qkv else (0, f)
        for t in range(2):
            xf = R.XF + st*12 + 4*t
            X = f"v[{xf}:{xf+3}]"
            acc = R.ACC + part*40 + 8*b + 4*t
            A = f"v[{acc}:{acc+3}]"
            if part == 2: res.append(f"v_mfma_f32_16x16x32_bf16 {A}, {X}, {W}, {A}")
            else: res.append(f"v_mfma_f32_16x16x32_bf16 {A}, {W}, {X}, {A}")
        if f in halo_idx:
            xf = R.XF + (st*12 if qkv else 0) + 8
            X = f"v[{xf}:{xf+3}]"
            acc = R.HALO + 4*halo_idx[f]
            A = f"v[{acc}:{acc+3}]"
            if qkv and part == 2: res.append(f"v_mfma_f32_16x16x32_bf16 {A}, {X}, {W}, {A}")
            else: res.append(f"v_mfma_f32_16x16x32_bf16 {A}, {W}, {X}, {A}")
        return res
    trk = LgkmTracker()
    def emit(ins, tag=None):
        a(ins)
        if ins.startswith("ds_read"): trk.issue(tag)
    for which in range(nx):
        for ins in rx(which, 0, 0): emit(ins, ('x', 0, which))
    for f in range(D):
        emit(rw(f, f, 0), ('w', 0, f)); emit(rw(f, f, 1), ('w', 0, f))
    loop = f"{lab}_loop"
    a.label(loop)
    start_q = list(trk.q)
    nwa = 5 if qkv else 2
    lastuse = {}
    for f in range(NB):
        va, off = waddr(f); lastuse[va] = f - D
    lim = NB - 1 - D - 1
    for st in range(2):
        items = []
        items.append([0, 3, [f"s_add_u32 s{S_WSLOT}, s{S_WSLOT}, 1"], None])
        items.append([0, 4, [f"s_cmp_eq_u32 s{S_WSLOT}, {p.NW}", f"s_cselect_b32 s{S_WDELTA}, s{S_NEGW}, s{S_SLOTC}", f"s_cselect_b32 s{S_WSLOT}, 0, s{S_WSLOT}"], None])
        xitems = []
        if st == 1:
            xitems.append([0, 1, [f"s_add_u32 s{S_XSLOT}, s{S_XSLOT}, 1", f"s_cmp_eq_u32 s{S_XSLOT}, {p.NX}", f"s_cselect_b32 s{S_XDELTA}, s{S_NEGX}, s{S_SLOTX}", f"s_cselect_b32 s{S_XSLOT}, 0, s{S_XSLOT}"], None])
            xa = [f"v_add_u32 v{R.VXA}, s{S_XDELTA}, v{R.VXA}", f"v_add_u32 v{R.VXB}, s{S_XDELTA}, v{R.VXB}"]
            if qkv: xa += [f"v_add_u32 v{VHA}, s{S_XDELTA}, v{VHA}", f"v_add_u32 v{VHB}, s{S_XDELTA}, v{VHB}"]
            for x in xa: xitems.append([0, lim, [x], None])
        for which in range(nx):
            tag = ('x', 1, which) if st == 0 else ('x', 2, which)
            xitems.append([0, lim, rx(which, 1 - st, 1 if st == 0 else 0), tag])
        witems = []
        for b in range(nwa):
            witems.append([lastuse[R.VW + b] + 1, NB - D + (b if qkv else b) - 1 if True else 0, [f"v_add_u32 v{R.VW+b}, s{S_WDELTA}, v{R.VW+b}"], None])
        queue = []
        if st == 1:
            for it in xitems[:1]: queue += [(it[0], x, it[3]) for x in it[2]]
        for it in items: queue += [(it[0], x, it[3]) for x in it[2]]
        rest = xitems[1:] if st == 1 else xitems
        for it in rest: queue += [(it[0], x, it[3]) for x in it[2]]
        wq = [(it[0], it[2][0]) for it in witems]
        for f in range(NB):
            g = st*NB + f
            fn = f + D
            if fn < NB: t1 = ('w', st, fn); fr = fn
            else: t1 = ('w', (st+1) % 2 + (2 if st == 1 else 0), fn - NB); fr = fn - NB
            ms = mfma_list(f, g, st)
            va, _ = waddr(fr)
            if fn >= NB:
                for e in list(wq):
                    if f"v{va}," in e[1].split()[1] + ",":
                        a(e[1]); wq.remove(e)
            need = {('w', st, f)}
            if p.pairwait:
                if f % 2 == 0 and f + 1 < NB: need |= {('w', st, f + 1)}
            if f == 0: need |= {('x', st, q) for q in range(nx)}
            trk.wait_for(a, need)
            free = []
            for k, m in enumerate(ms):
                a(m)
                slots = 2
                if k == 0: emit(rw(fr, g + D, 0), t1); slots -= 1
                if k == 1: emit(rw(fr, g + D, 1), t1); slots -= 1
                last = k == len(ms) - 1
                if last and not (p.pairwait and f % 2 == 0): slots -= 1
                while slots > 0:
                    cand = [e for e in wq if e[0] <= f]
                    if cand and not any('WDELTA' in q[1] or f"s{S_WDELTA}," in q[1] for q in queue if q[1].startswith('s_cselect_b32')):
                        e = cand[0]; a(e[1]); wq.remove(e); slots -= 1; continue
                    if queue and queue[0][0] <= f:
                        e = queue.pop(0)
                        emit(e[1], e[2]); slots -= 1
                        while e[1].startswith("s_mov_b64 exec, s[") or (queue and queue[0][1] == "s_mov_b64 exec, -1"):
                            e = queue.pop(0); emit(e[1], e[2]); slots -= 1
                            if e[1] == "s_mov_b64 exec, -1": break
                        continue
                    break
            if f == lim:
                while queue:
                    e = queue.pop(0); emit(e[1], e[2])
        assert not queue and not wq, (queue, wq)
        if p.dbar and st == 0:
            lb = a.newlabel("L_mid")
            a(f"s_cmp_eq_u32 s{S_CNT}, 0\ns_cbranch_scc0 {lb}\ns_barrier")
            a.label(lb)
        else:
            a("s_barrier")
    def norm(t): return (t[0], t[1] - 2, t[2]) if t[1] >= 2 else t
    endq = [norm(t) for t in trk.q]
    assert endq == start_q[len(start_q)-len(endq):], (endq, start_q)
    a(f"""s_add_u32 s{S_CNT}, s{S_CNT}, 1
    s_cmp_lt_u32 s{S_CNT}, 10
    s_cbranch_scc1 {loop}
    s_branch L_epi{role}""")

def pk_corr(acc, cpair, mreg, mode):
    if mode == 'c':
        base = mreg & ~1; hi = mreg & 1
        return f"v_pk_fma_f32 v[{acc}:{acc+1}], v[{cpair}:{cpair+1}], v[{base}:{base+1}], v[{acc}:{acc+1}] op_sel:[0,{hi},0] op_sel_hi:[1,{hi},1] neg_lo:[0,1,0] neg_hi:[0,1,0]"
    base = cpair & ~1; hi = cpair & 1
    return f"v_pk_fma_f32 v[{acc}:{acc+1}], v[{mreg}:{mreg+1}], v[{base}:{base+1}], v[{acc}:{acc+1}] op_sel:[0,{hi},0] op_sel_hi:[1,{hi},1] neg_lo:[1,0,0] neg_hi:[1,0,0]"

def dry_skip(a, p):
    lb = a.newlabel("L_dsk")
    a(f"s_cmp_eq_u32 s{S_DRY}, 1\ns_cbranch_scc1 {lb}")
    return lb

def zipl(*lists):
    res = []
    n = max(len(l) for l in lists)
    for i in range(n):
        for l in lists:
            if i < len(l): res.append(l[i])
    return res

class Seg:
    def __init__(self): self.l = []; self.trk = LgkmTracker()
    def __call__(self, s):
        for x in s.split("\n"):
            x = x.strip()
            if x and not x.startswith(';'): self.l.append(x)
    def ds(self, s, tag):
        self(s); self.trk.issue(tag)
    def wait(self, tags): self.trk.wait_for(self, tags)
    def waitall(self):
        self("s_waitcnt lgkmcnt(0)"); self.trk.q = []
    def flush(self, a, p, name):
        if p.nosched: out, t = self.l, 0
        else: out, t = sched.schedule(self.l)
        for x in out: a(x)
        self.l = []

def epilogue_qkv(a, p):
    S = R.ST
    Q, K, V = R.ACC, R.ACC + 40, R.ACC + 80
    KPP, KP0, KP1, VP, QP = 152, 162, 172, 182, 212
    ST_ = STAT(p, 'Q'); CB = CARE(p, 'Q')
    EX_LDS = 0
    H0 = R.HALO
    a.label("L_epiQ")
    stamp(a, p, 2)
    g = Seg()
    AM_W2 = 72
    g(f"""v_lshrrev_b32 v2, 4, v0
    v_and_b32 v3, 15, v0
    v_lshlrev_b32 v4, 4, v2
    v_lshlrev_b32 v5, 2, v3
    v_lshlrev_b32 v6, 3, v0
    v_add_u32 v6, {EXB(p)}, v6
    s_lshl_b32 s{S_T0}, s{S_WAVE}, 7
    s_add_u32 s{S_T0}, s{S_T0}, {ST_ + 64}
    v_add_u32 v14, s{S_T0}, v5
    v_add_u32 v15, s{S_T0}, v4
    v_add_u32 v10, {ST_}, v5
    v_add_u32 v11, {ST_}, v4
    v_add_u32 v4, {CB}, v4
    v_add_u32 v5, {CB}, v5
    s_lshl_b32 s{S_T1}, s{S_WAVE}, 6
    v_add_u32 v12, s{S_T1}, v4
    v_add_u32 v13, s{S_T1}, v5
    s_mul_i32 s{S_T2}, s{S_WAVE}, 320
    v_add_u32 v8, s{S_T2}, v4
    s_not_b64 s[{S_MASK}:{S_MASK+1}], s[{S_MASK}:{S_MASK+1}]
    s_mov_b32 s{S_SC0}, 0xfff0ffff
    s_mov_b32 s{S_SC0+1}, 0xf000ff00
    s_mov_b32 s{S_SC2}, 0xffc0fffc
    s_mov_b32 s{S_SC2+1}, 0xc000fc00
    s_cmp_lt_u32 s{S_WAVE}, 2
    s_cselect_b64 s[74:75], s[{S_MASK}:{S_MASK+1}], 0
    s_cmp_eq_u32 s{S_WAVE}, 2
    s_cselect_b64 s[{AM_W2}:{AM_W2+1}], -1, 0
    s_and_b64 s[76:77], s[{AM_W2}:{AM_W2+1}], 0xffff
    s_waitcnt lgkmcnt(0)
    s_mov_b64 exec, s[{S_MASK}:{S_MASK+1}]
    ds_write_b128 v12, v[{H0}:{H0+3}] offset:0
    ds_write_b128 v12, v[{H0+4}:{H0+7}] offset:320
    s_mov_b64 exec, s[74:75]
    ds_write_b128 v8, v[{H0+12}:{H0+15}] offset:256
    s_mov_b64 exec, 0xffff
    ds_write_b32 v13, v{H0+8} offset:640
    s_mov_b64 exec, s[76:77]
    ds_write_b32 v5, v{H0+12} offset:896
    s_mov_b64 exec, -1
    v_and_b32 v8, 1, v0
    v_lshl_add_u32 v8, v8, 2, v15
    v_cndmask_b32 v9, 64, 0, s[{S_SC0}:{S_SC0+1}]
    v_sub_u32 v9, v8, v9
    v_cndmask_b32 v7, 64, 0, s[{S_SC2}:{S_SC2+1}]
    v_sub_u32 v7, v8, v7
    s_waitcnt lgkmcnt(0)""")
    for x in g.l: a(x)
    g.l = []
    a("s_barrier")
    stamp(a, p, 3)
    CK, CV, CHK, CHV, CQ = 192, 152, 158, 157, 212
    g.ds(f"ds_read_b32 v{S}, v14", 'g1'); g.ds(f"ds_read_b32 v{S+1}, v14 offset:64", 'g1')
    for b in range(5): g.ds(f"ds_read_b128 v[{CK+4*b}:{CK+4*b+3}], v4 offset:{(80 + 16*b)*4}", 'g1')
    g.ds(f"ds_read_b128 v[{S+4}:{S+7}], v15", 'g2'); g.ds(f"ds_read_b128 v[{S+8}:{S+11}], v15 offset:64", 'g2')
    for b in range(5): g.ds(f"ds_read_b32 v{CV+b}, v5 offset:{(160 + 16*b)*4}", 'g2')
    g.wait({'g1'})
    g.ds(f"ds_read_b32 v{S+16}, v10", 'g3'); g.ds(f"ds_read_b128 v[{S+18}:{S+21}], v11", 'g3')
    g.ds(f"ds_read_b128 v[{CHK}:{CHK+3}], v12 offset:320", 'g3'); g.ds(f"ds_read_b32 v{CHV}, v13 offset:640", 'g3')
    for t in (1, 0):
        for b in range(5):
            g(pk_corr(K+8*b+4*t, CK+4*b, S+t, 'c')); g(pk_corr(K+8*b+4*t+2, CK+4*b+2, S+t, 'c'))
    g.wait({'g2'})
    for b in range(5): g.ds(f"ds_read_b128 v[{CQ+4*b}:{CQ+4*b+3}], v4 offset:{(16*b)*4}", 'g4')
    for t in (1, 0):
        for b in range(5):
            g(pk_corr(V+8*b+4*t, CV+b, S+4+4*t, 'm')); g(pk_corr(V+8*b+4*t+2, CV+b, S+4+4*t+2, 'm'))
    g.wait({'g3'})
    g.ds(f"ds_read_b32 v{S+2}, v14 offset:576", 'g5'); g.ds(f"ds_read_b32 v{S+3}, v14 offset:640", 'g5')
    g.ds(f"ds_read_b32 v{S+12}, v9 offset:576", 'g5'); g.ds(f"ds_read_b32 v{S+13}, v9 offset:{576+64}", 'g5')
    g.ds(f"ds_read_b32 v{S+14}, v7 offset:{576+8}", 'g5'); g.ds(f"ds_read_b32 v{S+15}, v7 offset:{576+64+8}", 'g5')
    HK, HV, HX = H0+4, H0+8, H0+12
    g(pk_corr(HK, CHK, S+16, 'c')); g(pk_corr(HK+2, CHK+2, S+16, 'c'))
    g(pk_corr(HV, CHV, S+18, 'm')); g(pk_corr(HV+2, CHV, S+20, 'm'))
    W2 = f"s[{AM_W2}:{AM_W2+1}]"
    PX, SX = 2, 1
    for r in range(4): g(f"v_cndmask_b32 v{H0+r}, v{CK+16+r}, v{S+18+r}, {W2}")
    g(f"v_cndmask_b32 v2, v{S+16}, v{CV+4}, {W2}")
    g(f"v_pk_fma_f32 v[{HX}:{HX+1}], v[{H0}:{H0+1}], v[2:3], v[{HX}:{HX+1}] op_sel:[0,0,0] op_sel_hi:[1,0,1] neg_lo:[1,0,0] neg_hi:[1,0,0]")
    g(f"v_pk_fma_f32 v[{HX+2}:{HX+3}], v[{H0+2}:{H0+3}], v[2:3], v[{HX+2}:{HX+3}] op_sel:[0,0,0] op_sel_hi:[1,0,1] neg_lo:[1,0,0] neg_hi:[1,0,0]")
    def packK(t):
        d0 = KP0 if t == 0 else KP1
        for b in range(5):
            g(f"v_cvt_pk_bf16_f32 v{d0+2*b}, v{K+8*b+4*t}, v{K+8*b+4*t+1}"); g(f"v_cvt_pk_bf16_f32 v{d0+2*b+1}, v{K+8*b+4*t+2}, v{K+8*b+4*t+3}")
    def packV(t):
        for b in range(5):
            g(f"v_cvt_pk_bf16_f32 v{VP+6*b+2+2*t}, v{V+8*b+4*t}, v{V+8*b+4*t+1}"); g(f"v_cvt_pk_bf16_f32 v{VP+6*b+3+2*t}, v{V+8*b+4*t+2}, v{V+8*b+4*t+3}")
    packK(1); packV(1)
    g(f"""v_cvt_pk_bf16_f32 v60, v{HK}, v{HK+1}
    v_cvt_pk_bf16_f32 v61, v{HK+2}, v{HK+3}
    v_cvt_pk_bf16_f32 v62, v{HV}, v{HV+1}
    v_cvt_pk_bf16_f32 v63, v{HV+2}, v{HV+3}
    v_cvt_pk_bf16_f32 v68, v{HX}, v{HX+1}
    v_cvt_pk_bf16_f32 v69, v{HX+2}, v{HX+3}
    s_lshl_b32 s{S_T0}, s{S_WAVE}, 9
    v_add_u32 v12, s{S_T0}, v6
    s_mul_i32 s{S_T1}, s{S_WAVE}, 5120
    v_add_u32 v13, s{S_T1}, v6
    s_cmp_eq_u32 s{S_WAVE}, 1
    s_movk_i32 s{S_T2}, {5*5120}
    s_cselect_b32 s{S_T2}, {4*512}, s{S_T2}
    s_cmp_eq_u32 s{S_WAVE}, 2
    s_cselect_b32 s{S_T2}, {9*512}, s{S_T2}
    v_add_u32 v6, s{S_T2}, v6""")
    g.ds(f"ds_write_b64 v12, v[60:61] offset:{EX_LDS}", 'x'); g.ds(f"ds_write_b64 v12, v[62:63] offset:{EX_LDS + 5*512}", 'x')
    g.ds(f"ds_write_b64 v6, v[68:69] offset:{EX_LDS}", 'x')
    for b in range(5):
        g.ds(f"ds_write_b64 v13, v[{KP1+2*b}:{KP1+2*b+1}] offset:{EX_LDS + 5120 + b*512}", 'x')
        g.ds(f"ds_write_b64 v13, v[{VP+6*b+4}:{VP+6*b+5}] offset:{EX_LDS + 5120 + (5+b)*512}", 'x')
    packK(0); packV(0)
    g.wait({'g4'}) if False else None
    g.trk.wait_for(g, {'g4', 'g5'})
    for b in range(5):
        for t in range(2):
            g(pk_corr(Q+8*b+4*t, CQ+4*b, S+t, 'c')); g(pk_corr(Q+8*b+4*t+2, CQ+4*b+2, S+t, 'c'))
    for b in range(5):
        for t in range(2):
            acc = Q + 8*b + 4*t
            g(f"v_cvt_pk_bf16_f32 v{QP+10*t+2*b}, v{acc}, v{acc+1}"); g(f"v_cvt_pk_bf16_f32 v{QP+10*t+2*b+1}, v{acc+2}, v{acc+3}")
    g.waitall()
    g.flush(a, p, "E2")
    stamp(a, p, 4)
    a("s_barrier")
    for b in range(5):
        g.ds(f"ds_read_b64 v[{KPP+2*b}:{KPP+2*b+1}], v13 offset:{EX_LDS + b*512}", 'pk')
    for b in range(5):
        g.ds(f"ds_read_b64 v[{VP+6*b}:{VP+6*b+1}], v13 offset:{EX_LDS + (5+b)*512}", 'pv')
    def m64(sreg, val):
        g(f"s_mov_b32 s{sreg}, {val & 0xffffffff:#x}\ns_mov_b32 s{sreg+1}, {(val >> 32) & 0xffffffff:#x}")
    m64(S_MP, 0xAAAAAAAAAAAAAAAA)
    for h in (1, 2, 3): m64(S_GE + 2*(h-1), (~((1 << (16*h)) - 1)) & (2**64-1))
    for h in (0, 1, 2): m64(S_LE + 2*h, (1 << (16*(h+1))) - 1)
    SP0, SC0_, SP2, SC2_ = 8, 9, 10, 11
    F = 136
    BB = 140
    RK = 142
    MPs = f"s[{S_MP}:{S_MP+1}]"; SC0s = f"s[{S_SC0}:{S_SC0+1}]"; SC2s = f"s[{S_SC2}:{S_SC2+1}]"
    g(f"""v_mov_b32 v146, 0x0c0c0100
    v_mov_b32 v147, 0x01000c0c
    v_cndmask_b32 v146, v146, v147, {MPs}
    v_mov_b32 v147, 0x0c0c0302
    v_mov_b32 v148, 0x03020c0c
    v_cndmask_b32 v147, v147, v148, {MPs}
    v_mov_b32 v148, 0x0c0c0c0c
    v_cndmask_b32 v{SC0_}, v148, v146, {SC0s}
    v_cndmask_b32 v{SP0}, v146, v148, {SC0s}
    v_cndmask_b32 v{SC2_}, v148, v147, {SC2s}
    v_cndmask_b32 v{SP2}, v147, v148, {SC2s}
    s_or_b32 s{S_T0}, s{S_RT}, s{S_WAVE}
    s_cmp_eq_u32 s{S_T0}, 0
    s_cselect_b32 s{S_T0}, {f2u(-1e30):#x}, 0
    v_mov_b32 v149, s{S_T0}
    v_cndmask_b32 v{BB}, v149, 0, {SC0s}
    v_cndmask_b32 v{BB+1}, v149, 0, {SC2s}
    s_lshl_b32 s{S_T0}, s{S_RT}, 1
    s_lshr_b32 s{S_T1}, s{S_WAVE}, 1
    s_add_u32 s{S_T0}, s{S_T0}, s{S_T1}
    s_mul_i32 s{S_T0}, s{S_T0}, 74
    s_mul_i32 s{S_T2}, s{S_COL}, 5
    s_lshr_b32 s{S_T2}, s{S_T2}, 1
    s_add_u32 s{S_T0}, s{S_T0}, s{S_T2}
    s_lshl_b32 s{S_T0}, s{S_T0}, 12
    s_and_b32 s{S_T1}, s{S_WAVE}, 1
    s_lshl_b32 s{S_T1}, s{S_T1}, 11
    s_add_u32 s{S_T5}, s{S_T0}, s{S_T1}
    v_lshlrev_b32 v7, 4, v0""")
    SCALE = (20 ** -0.5) * 1.4426950408889634
    for t in range(2):
        g(f"""v_mov_b32 v{RK+2*t}, v{S+12+t}
        v_mov_b32 v{RK+2*t+1}, v{S+14+t}
        v_mul_f32 v{F+2*t}, {f2u(SCALE):#x}, v{S+2+t}
        v_mul_f32 v{F+2*t+1}, v{F+2*t}, v{S+14+t}
        v_mul_f32 v{F+2*t}, v{F+2*t}, v{S+12+t}""")
    def T(t):
        return dict(QM=16+16*t, PP=16+16*t, SC=48+32*t, SP=64+32*t, Z=112+8*t, MX=128+4*t, OP=(142 if False else 150) if False else None)
    OPS = {0: 96 + 0, 1: 0}
    for t in range(2):
        x = T(t); QM = x['QM']
        for h in range(4):
            q = QP + 10*t + 2*h; d = QM + 4*h
            if h == 0: g(f"v_mov_b32 v{d}, v{q}\nv_mov_b32 v{d+1}, v{q+1}")
            else: g(f"v_cndmask_b32 v{d}, 0, v{q}, {GE(h)}\nv_cndmask_b32 v{d+1}, 0, v{q+1}, {GE(h)}")
            if h == 3: g(f"v_mov_b32 v{d+2}, v{q+2}\nv_mov_b32 v{d+3}, v{q+3}")
            else: g(f"v_cndmask_b32 v{d+2}, 0, v{q+2}, {LE(h)}\nv_cndmask_b32 v{d+3}, 0, v{q+3}, {LE(h)}")
    g.wait({'pk'})
    for t in (1, 0):
        x = T(t)
        Kc = KP0 if t == 0 else KP1
        Kp = KPP if t == 0 else KP0
        for h in range(4):
            g(f"v_mfma_f32_16x16x32_bf16 v[{x['SC']+4*h}:{x['SC']+4*h+3}], v[{Kc+2*h}:{Kc+2*h+3}], v[{x['QM']+4*h}:{x['QM']+4*h+3}], 0")
            g(f"v_mfma_f32_16x16x32_bf16 v[{x['SP']+4*h}:{x['SP']+4*h+3}], v[{Kp+2*h}:{Kp+2*h+3}], v[{x['QM']+4*h}:{x['QM']+4*h+3}], 0")
    def xreduce(op, b):
        g(f"""v_permlane32_swap_b32 v{b}, v{b+2}
        v_permlane32_swap_b32 v{b+1}, v{b+3}
        {op} v{b}, v{b}, v{b+2}
        {op} v{b+1}, v{b+1}, v{b+3}
        v_permlane16_swap_b32 v{b}, v{b+1}
        {op} v{b}, v{b}, v{b+1}""")
    def xbcast(b):
        g(f"""v_mov_b32 v{b+1}, v{b}
        v_permlane16_swap_b32 v{b}, v{b+1}
        v_mov_b32 v{b+2}, v{b}
        v_mov_b32 v{b+3}, v{b+1}
        v_permlane32_swap_b32 v{b}, v{b+2}
        v_permlane32_swap_b32 v{b+1}, v{b+3}""")
    for t in (1, 0):
        x = T(t); Z, MX, PP = x['Z'], x['MX'], x['PP']
        for h in range(4):
            c, pp = x['SC']+4*h, x['SP']+4*h
            z = Z + 2*h
            g(f"""v_cndmask_b32 v{c}, v{c}, v{c+1}, {MPs}
            v_cndmask_b32 v{c+2}, v{c+2}, v{c+3}, {MPs}
            v_cndmask_b32 v{pp}, v{pp}, v{pp+1}, {MPs}
            v_cndmask_b32 v{pp+2}, v{pp+2}, v{pp+3}, {MPs}
            v_cndmask_b32 v{z}, v{pp}, v{c}, {SC0s}
            v_cndmask_b32 v{z+1}, v{pp+2}, v{c+2}, {SC2s}""")
            if t == 0: g(f"v_pk_fma_f32 v[{z}:{z+1}], v[{z}:{z+1}], v[{F}:{F+1}], v[{BB}:{BB+1}]")
            else: g(f"v_pk_mul_f32 v[{z}:{z+1}], v[{z}:{z+1}], v[{F+2}:{F+3}]")
            g(f"v_max_f32 v{MX+h}, v{z}, v{z+1}")
        xreduce("v_max_f32", MX); xbcast(MX)
        for h in range(4):
            z = Z + 2*h; m = MX + h
            g(f"v_pk_add_f32 v[{z}:{z+1}], v[{z}:{z+1}], v[{m & ~1}:{(m & ~1)+1}] op_sel:[0,{m & 1}] op_sel_hi:[1,{m & 1}] neg_lo:[0,1] neg_hi:[0,1]")
            g(f"v_exp_f32 v{z}, v{z}\nv_exp_f32 v{z+1}, v{z+1}")
            g(f"v_add_f32 v{m}, v{z}, v{z+1}")
        xreduce("v_add_f32", MX)
        for h in range(4):
            z = Z + 2*h
            g(f"v_pk_mul_f32 v[{z}:{z+1}], v[{z}:{z+1}], v[{RK+2*t}:{RK+2*t+1}]")
        g(f"v_rcp_f32 v{MX}, v{MX}")
        xbcast(MX)
        for h in range(4):
            z = Z + 2*h; m = MX + h; d = PP + 4*h
            g(f"v_pk_mul_f32 v[{z}:{z+1}], v[{z}:{z+1}], v[{m & ~1}:{(m & ~1)+1}] op_sel:[0,{m & 1}] op_sel_hi:[1,{m & 1}]")
            g(f"v_cvt_pk_bf16_f32 v{z}, v{z}, v{z+1}")
            g(f"""v_perm_b32 v{d}, v{z}, v{z}, v{SP0}
            v_perm_b32 v{d+1}, v{z}, v{z}, v{SP2}
            v_perm_b32 v{d+2}, v{z}, v{z}, v{SC0_}
            v_perm_b32 v{d+3}, v{z}, v{z}, v{SC2_}""")
    g.wait({'pv'})
    OP = {0: 212, 1: 222}
    for t in (1, 0):
        x = T(t)
        for h in range(4):
            v1 = VP + 6*h + 2*t; v2 = VP + 6*(h+1) + 2*t
            g(f"v_mfma_f32_16x16x32_bf16 v[{x['SC']+4*h}:{x['SC']+4*h+3}], v[{v1}:{v1+3}], v[{x['PP']+4*h}:{x['PP']+4*h+3}], 0")
            g(f"v_mfma_f32_16x16x32_bf16 v[{x['SP']+4*h}:{x['SP']+4*h+3}], v[{v2}:{v2+3}], v[{x['PP']+4*h}:{x['PP']+4*h+3}], 0")
        OF, OS = x['SC'], x['SP']
        for b in range(5):
            if b == 0: src = OF
            elif b == 4: src = OS + 12
            else:
                src = OF + 4*b
                for q in range(4): g(f"v_cndmask_b32 v{src+q}, v{OS+4*(b-1)+q}, v{src+q}, {GE(b)}")
            g(f"v_cvt_pk_bf16_f32 v{OP[t]+2*b}, v{src}, v{src+1}")
            g(f"v_cvt_pk_bf16_f32 v{OP[t]+2*b+1}, v{src+2}, v{src+3}")
    g.flush(a, p, "E3")
    stamp(a, p, 5)
    if not p.latestore:
        o_stores(a, p)
    else:
        a(f"s_mov_b32 s{S_OST}, s{S_T5}")
    stamp(a, p, 6)
    a("s_branch L2_c")

S_OST = 83
def o_stores(a, p, sreg=None):
    OP = {0: 212, 1: 222}
    TM = {0: 232, 1: 236}
    sb = S_T5 if sreg is None else sreg
    le = a.newlabel("L_even"); ld = a.newlabel("L_done")
    def shared(t, r):
        x = TM[t]
        a(f"""v_mov_b32 v{x}, v{r}
        v_mov_b32 v{x+2}, v{r}
        v_mov_b32 v{x+1}, v{r+1}
        v_mov_b32 v{x+3}, v{r+1}
        v_permlane16_swap_b32 v{x}, v{x+2}
        v_permlane16_swap_b32 v{x+1}, v{x+3}""")
    a(f"s_bitcmp1_b32 s{S_COL}, 0\ns_cbranch_scc0 {le}")
    for t in range(2): shared(t, OP[t])
    for t in range(2):
        o = OP[t]; x = TM[t]
        a(f"""s_add_u32 s{S_T0}, s{sb}, {t*1024}
        s_mov_b32 exec_lo, 0xffff0000
        s_mov_b32 exec_hi, 0xffff0000
        buffer_store_dwordx4 v[{x}:{x+3}], v7, {WSR}, s{S_T0} offen {p.stflags}
        s_mov_b64 exec, -1
        s_add_u32 s{S_T0}, s{S_T0}, 4096
        buffer_store_dwordx4 v[{o+2}:{o+5}], v7, {WSR}, s{S_T0} offen {p.stflags}
        s_add_u32 s{S_T0}, s{S_T0}, 4096
        buffer_store_dwordx4 v[{o+6}:{o+9}], v7, {WSR}, s{S_T0} offen {p.stflags}""")
    a(f"s_branch {ld}")
    a.label(le)
    for t in range(2): shared(t, OP[t] + 8)
    for t in range(2):
        o = OP[t]; x = TM[t]
        a(f"""s_add_u32 s{S_T0}, s{sb}, {t*1024}
        buffer_store_dwordx4 v[{o}:{o+3}], v7, {WSR}, s{S_T0} offen {p.stflags}
        s_add_u32 s{S_T0}, s{S_T0}, 4096
        buffer_store_dwordx4 v[{o+4}:{o+7}], v7, {WSR}, s{S_T0} offen {p.stflags}
        s_add_u32 s{S_T0}, s{S_T0}, 4096
        s_mov_b32 exec_lo, 0x0000ffff
        s_mov_b32 exec_hi, 0x0000ffff
        buffer_store_dwordx4 v[{x}:{x+3}], v7, {WSR}, s{S_T0} offen {p.stflags}
        s_mov_b64 exec, -1""")
    a.label(ld)

def epilogue_h(a, p):
    S = R.ST
    ST_ = STAT(p, 'H'); CB = CARE(p, 'H')
    a.label("L_epiH")
    stamp(a, p, 2)
    a(f"""v_lshrrev_b32 v2, 4, v0
    v_and_b32 v3, 15, v0
    v_lshlrev_b32 v4, 4, v2
    v_lshlrev_b32 v5, 2, v3
    v_add_u32 v4, {CB}, v4
    s_lshl_b32 s{S_T0}, s{S_WAVE}, 6
    v_add_u32 v12, s{S_T0}, v4
    s_lshl_b32 s{S_T0}, s{S_WAVE}, 7
    s_add_u32 s{S_T0}, s{S_T0}, {ST_}
    v_add_u32 v14, s{S_T0}, v5
    s_not_b64 s[{S_MASK}:{S_MASK+1}], s[{S_MASK}:{S_MASK+1}]
    s_waitcnt lgkmcnt(0)
    s_mov_b64 exec, s[{S_MASK}:{S_MASK+1}]""")
    for n in range(4):
        h = R.HALO + 4*n
        a(f"ds_write_b128 v12, v[{h}:{h+3}] offset:{n*256}")
    a("s_mov_b64 exec, -1\ns_waitcnt lgkmcnt(0)\ns_barrier")
    stamp(a, p, 3)
    g = Seg()
    CR = 152
    for k in range(4): g.ds(f"ds_read_b32 v{S+k}, v14 offset:{[0, 64, 576, 640][k]}", 's')
    for b in range(7): g.ds(f"ds_read_b128 v[{CR+4*b}:{CR+4*b+3}], v4 offset:{16*b*4}", ('c', b))
    g(f"""s_lshl_b32 s{S_T0}, s{S_RT}, 1
    s_lshr_b32 s{S_T1}, s{S_WAVE}, 1
    s_add_u32 s{S_T0}, s{S_T0}, s{S_T1}
    s_mul_i32 s{S_T0}, s{S_T0}, 74
    s_mul_i32 s{S_T2}, s{S_COL}, {1 if p.staged else 7}
    s_add_u32 s{S_T0}, s{S_T0}, s{S_T2}
    s_add_u32 s{S_T0}, s{S_T0}, 20
    s_lshl_b32 s{S_T0}, s{S_T0}, 12
    s_and_b32 s{S_T1}, s{S_WAVE}, 1
    s_lshl_b32 s{S_T1}, s{S_T1}, 11
    s_add_u32 s{S_T5}, s{S_T0}, s{S_T1}
    s_cmp_eq_u32 s{S_COL}, 7
    s_cselect_b32 s{S_T3}, {OOB}, 0
    v_lshlrev_b32 v7, 4, v0
    v_mov_b32 v8, 0""")
    pre = list(g.l); preq = list(g.trk.q)
    def body(late):
        issued = 7
        stores = []
        for pr in range(7):
            g.wait({'s', ('c', 2*pr), ('c', 2*pr+1)})
            while issued < 14 and issued < 2*pr + 6:
                g.ds(f"ds_read_b128 v[{CR+4*issued}:{CR+4*issued+3}], v4 offset:{16*issued*4}", ('c', issued)); issued += 1
            for t in range(2):
                o = R.ACC + 8*(2*pr) + 4*t
                for bb in range(2):
                    b = 2*pr + bb
                    acc = R.ACC + 8*b + 4*t
                    c = CR + 4*b
                    hi = (S+2+t) & 1; base = (S+2+t) & ~1
                    g(pk_corr(acc, c, S+t, 'c')); g(pk_corr(acc+2, c+2, S+t, 'c'))
                    for q in (0, 2): g(f"v_pk_mul_f32 v[{acc+q}:{acc+q+1}], v[{acc+q}:{acc+q+1}], v[{base}:{base+1}] op_sel:[0,{hi}] op_sel_hi:[1,{hi}]")
                    g(f"v_cvt_pk_bf16_f32 v{o+2*bb}, v{acc}, v{acc+1}\nv_cvt_pk_bf16_f32 v{o+2*bb+1}, v{acc+2}, v{acc+3}")
                    g(f"v_pk_max_i16 v{o+2*bb}, v{o+2*bb}, v8\nv_pk_max_i16 v{o+2*bb+1}, v{o+2*bb+1}, v8")
            st = []
            if pr == 5: st.append(f"s_add_u32 s{S_T5}, s{S_T5}, s{S_T3}")
            for t in range(2):
                o = R.ACC + 8*(2*pr) + 4*t
                st.append(f"buffer_store_dwordx4 v[{o}:{o+3}], v7, {WSR}, s{S_T5} offen offset:{t*1024} {p.stflags}")
            step = ((OFFR[pr+1] - OFFR[pr]) if pr < 6 else 1) * 4096 if p.staged else 4096
            st.append(f"s_add_u32 s{S_T5}, s{S_T5}, {step}")
            if late: stores += st
            else:
                for x in st: g(x)
        return stores
    if p.hprio:
        ll = a.newlabel("L_hlate"); le = a.newlabel("L_hend")
        a(f"s_cmp_ge_u32 s{S_COL}, {p.hprio}\ns_cbranch_scc1 {ll}")
        body(False)
        g.flush(a, p, "EH early")
        a(f"s_branch {le}")
        a.label(ll)
        g.l = list(pre); g.trk.q = list(preq)
        stores = body(True)
        g.flush(a, p, "EH late")
        if p.hdelay: a(f"s_sleep {p.hdelay}")
        for x in stores: a(x)
        a.label(le)
    else:
        body(False)
        g.flush(a, p, "EH")
    if p.wflags:
        a(f"""s_lshl_b32 s{S_T0}, s{S_RT}, 3
        s_add_u32 s{S_T0}, s{S_T0}, s{S_COL}
        s_lshl_b32 s{S_T0}, s{S_T0}, 2
        s_add_u32 s{S_T0}, s{S_T0}, s{S_WAVE}
        s_mul_i32 s{S_T0}, s{S_T0}, {3*128}
        s_add_u32 s{S_T0}, s{S_T0}, {FL2_OFF}
        v_mov_b32 v2, 1
        v_mov_b32 v3, 0
        s_mov_b64 exec, 1
        s_waitcnt vmcnt(0)
        buffer_store_dword v2, v3, {WSR}, s{S_T0} offen {p.stflags}
        s_mov_b64 exec, -1""")
    if p.staged:
        a(f"""s_lshl_b32 s{S_T0}, s{S_RT}, 3
        s_add_u32 s{S_T0}, s{S_T0}, s{S_COL}
        s_lshl_b32 s{S_T0}, s{S_T0}, 2
        s_add_u32 s{S_T0}, s{S_T0}, s{S_WAVE}
        s_mul_i32 s{S_T0}, s{S_T0}, {3*128}
        s_add_u32 s{S_T0}, s{S_T0}, {FL2_OFF}
        v_mov_b32 v2, 1
        v_mov_b32 v3, 0
        s_mov_b64 exec, 1
        s_waitcnt vmcnt(10)
        buffer_store_dword v2, v3, {WSR}, s{S_T0} offen {p.stflags}
        s_waitcnt vmcnt(5)
        buffer_store_dword v2, v3, {WSR}, s{S_T0} offen offset:128 {p.stflags}
        s_waitcnt vmcnt(2)
        buffer_store_dword v2, v3, {WSR}, s{S_T0} offen offset:256 {p.stflags}
        s_mov_b64 exec, -1""")
    stamp(a, p, 5)
    stamp(a, p, 6)
    a("s_branch L2_c")

def consumer_entry(a, p, role):
    a.label(f"L_c{role}")
    if p.prioC: a(f"s_setprio {p.prioC}")
    a.label(f"L_c{role}_init")
    consumer_setup(a, p, role)
    kwait(a, p, ('ws',))
    stamp(a, p, 0)
    a("s_barrier")
    stamp(a, p, 1)
    for w in range(3):
        a(f"s_cmp_eq_u32 s{S_WAVE}, {w}\ns_cbranch_scc1 L_c{role}{w}")
    a(f"s_branch L_c{role}3")

def producer(a, p):
    a.label("L_prod")
    if p.prioP: a(f"s_setprio {p.prioP}")
    VWO = 8; VXO = 16; VT = 72
    a(f"""s_sub_u32 s{S_T5}, s{S_WAVE}, 4
    s_mul_i32 s{S_T0}, s{S_T5}, 48
    s_lshl_b32 s{S_T1}, s{S_RT}, 7
    s_cmp_eq_u32 s{S_ROLE}, 0
    s_cselect_b32 s{S_T2}, 16, 0
    s_sub_u32 s{S_T1}, s{S_T1}, s{S_T2}
    s_add_u32 s{S_T1}, s{S_T1}, s{S_T0}
    s_movk_i32 s{S_T3}, {XPITCH}
    v_lshrrev_b32 v{VT+2}, 3, v0
    v_add_u32 v{VT+2}, s{S_T1}, v{VT+2}
    v_lshrrev_b32 v{VT}, 4, v0
    v_xor_b32 v{VT}, v{VT}, v0
    v_and_b32 v{VT}, 7, v{VT}
    v_lshlrev_b32 v{VT}, 4, v{VT}                ; c0
    v_xor_b32 v{VT+1}, 64, v{VT}                 ; c1""")
    for n in range(6):
        a(f"""v_add_u32 v{VT+3}, {8*n}, v{VT+2}
        v_max_i32 v{VT+3}, 0, v{VT+3}
        v_mad_u32_u24 v{VXO+n}, v{VT+3}, s{S_T3}, v{VT+(n&1)}""")
    a(f"""s_cmp_eq_u32 s{S_T5}, 2
    s_cselect_b32 s{S_T0}, {OOB}, 0
    s_cmp_eq_u32 s{S_ROLE}, 0
    s_cselect_b32 s{S_T0}, 0, s{S_T0}
    v_add_u32 v{VXO+4}, s{S_T0}, v{VXO+4}
    v_add_u32 v{VXO+5}, s{S_T0}, v{VXO+5}""")
    for role in ('Q', 'H'):
        qkv = role == 'Q'
        if qkv: a(f"s_cmp_eq_u32 s{S_ROLE}, 0\ns_cbranch_scc0 L_prodH")
        else: a.label("L_prodH")
        nW = 6 if qkv else 5
        nX = 6
        XB = XBASE(p, role)
        rowslots = 36 if qkv else 28
        pitch = WQ_PITCH if qkv else W1_PITCH
        magic = {36: 1821, 28: 2341}[rowslots]
        for nn in range(64*nW*3): assert (nn*magic) >> 16 == nn // rowslots
        def wvoff(n):
            a(f"""v_add_u32 v{VT}, {64*n}, v{VT+7}
            v_mul_u32_u24 v{VT+1}, {magic}, v{VT}
            v_lshrrev_b32 v{VT+1}, 16, v{VT+1}
            v_mul_u32_u24 v{VT+2}, {rowslots}, v{VT+1}
            v_sub_u32 v{VT+2}, v{VT}, v{VT+2}
            v_lshrrev_b32 v{VT+3}, 2, v{VT+1}
            v_and_b32 v{VT+3}, 2, v{VT+3}""")
            if qkv:
                a(f"""v_mul_u32_u24 v{VT+4}, 43, v{VT+2}
                v_lshrrev_b32 v{VT+4}, 9, v{VT+4}
                v_mul_u32_u24 v{VT+6}, 12, v{VT+4}
                v_sub_u32 v{VT+6}, v{VT+2}, v{VT+6}
                v_xor_b32 v{VT+6}, v{VT+6}, v{VT+3}
                v_cmp_le_u32 vcc, s{S_THETA}, v{VT+6}
                v_mul_u32_u24 v{VT+1}, {pitch}, v{VT+1}
                v_cndmask_b32 v{VT+3}, 0, 2, vcc
                v_sub_u32 v{VT+6}, v{VT+6}, v{VT+3}
                v_mul_u32_u24 v{VT+4}, 1280, v{VT+4}
                v_lshl_add_u32 v{VT+1}, v{VT+6}, 4, v{VT+1}
                v_add3_u32 v{VWO+n}, v{VT+1}, v{VT+4}, s{S_T2}""")
            else:
                a(f"""v_xor_b32 v{VT+2}, v{VT+2}, v{VT+3}
                v_cmp_gt_u32 vcc, 32, v{VT+1}
                v_mul_u32_u24 v{VT+1}, {pitch}, v{VT+1}
                v_lshl_add_u32 v{VT+1}, v{VT+2}, 4, v{VT+1}
                v_add_u32 v{VT+1}, s{S_T2}, v{VT+1}
                v_cndmask_b32 v{VWO+n}, v{VT+5}, v{VT+1}, vcc""")
        a(f"""s_mul_i32 s{S_T0}, s{S_T5}, {64*nW}
        v_add_u32 v{VT+7}, s{S_T0}, v0
        v_mov_b32 v{VT+5}, {OOB}
        s_mul_i32 s{S_T3}, s{S_T5}, {nW*1024}
        s_mul_i32 s{S_T4}, s{S_T5}, {6*1024}
        s_add_u32 s{S_T4}, s{S_T4}, {XB}
        s_mov_b32 s{S_DT}, s{S_D0}
        s_mul_i32 s{S_T2}, s{S_COL}, {160 if qkv else 448}""")
        kwait(a, p, ('x', 'w') + (('ws',) if p.stamps else ()))
        stamp(a, p, 0)
        def dtable():
            base = 0
            for wi, wd in enumerate(WL(p)):
                if wi == 0:
                    a(f"s_mov_b32 s{S_T1}, s{S_D0}")
                else:
                    a(f"""s_mul_i32 s{S_T0}, s{S_RAW}, {(65536 + wd - 1)//wd}
                    s_lshr_b32 s{S_T0}, s{S_T0}, 16
                    s_mul_i32 s{S_T0}, s{S_T0}, {wd}
                    s_sub_u32 s{S_T1}, s{S_RAW}, s{S_T0}""")
                    if not p.rot: a(f"s_mov_b32 s{S_T1}, 0")
                for k in range(wd):
                    m = base + k
                    if m == 0: continue
                    a(f"""s_add_u32 s{S_DT+m}, s{S_T1}, {k}
                    s_cmp_ge_u32 s{S_DT+m}, {wd}
                    s_cselect_b32 s{S_T0}, {wd}, 0
                    s_sub_u32 s{S_DT+m}, s{S_DT+m}, s{S_T0}""")
                    if base: a(f"s_add_u32 s{S_DT+m}, s{S_DT+m}, {base}")
                base += wd
        vm = VmTracker()
        def dma_w(st, first=False):
            m, h = divmod(st, 2)
            a(f"s_mul_i32 s{S_WOFF}, s{S_DT+m}, {64*pitch}")
            if h: a(f"s_add_u32 s{S_WOFF}, s{S_WOFF}, {32*pitch}")
            for n in range(nW):
                if first: wvoff(n)
                if not p.nodma: a(f"""s_add_u32 m0, s{S_T3}, {(st % p.NW)*SW(role) + n*1024}
                s_nop 0
                buffer_load_dwordx4 v{VWO+n}, {WW}, s{S_WOFF} offen lds""")
            vm.issue(('W', st), nW)
        def dma_x(d, part):
            a(f"s_lshl_b32 s{S_XOFF}, s{S_DT+d}, 7")
            for n in (range(0, 3) if part == 0 else range(3, 6)):
                if not p.nodma: a(f"""s_add_u32 m0, s{S_T4}, {(d % p.NX)*SX + n*1024}
                s_nop 0
                buffer_load_dwordx4 v{VXO+n}, {XS}, s{S_XOFF} offen lds""")
            vm.issue(('x', d), 3)
        wq = list(range(20)); xq = [(d, pt) for d in range(10) for pt in range(2)]
        sched = {}
        pro = []
        for kind, i in p.ramp:
            if kind == 'W': pro.append(('W', i)); wq.remove(i)
            else:
                for pt in range(2): pro.append(('x', i, pt)); xq.remove((i, pt))
        sched[-1] = pro
        if not p.dbar:
            for sI in range(20):
                items = []
                budget = p.maxw
                while wq and wq[0] <= sI + p.NW - 1 and budget > 0:
                    items.append(('W', wq.pop(0))); budget -= 1
                nxh = 0
                while xq and (2*(xq[0][0] - p.NX) + 1 <= sI) and nxh < p.maxx:
                    d, pt = xq.pop(0); items.append(('x', d, pt)); nxh += 1
                items.sort(key=lambda t: (t[1] - 2 if t[0] == 'W' else 2*t[1] - 2))
                sched[sI] = items
            bars = list(range(-1, 20))
            def need_at(sI):
                n = set()
                if sI + 2 < 20: n |= {('W', sI + 2), ('x', (sI + 2)//2)}
                return n
        else:
            for sI in range(20): sched[sI] = []
            def fill(sI, wmax, xmax, budget):
                items = []
                while wq and wq[0] <= wmax and budget > 0:
                    items.append(('W', wq.pop(0))); budget -= 1
                while xq and xq[0][0] <= xmax:
                    d, pt = xq.pop(0); items.append(('x', d, pt))
                items.sort(key=lambda t: (t[1] if t[0] == 'W' else 2*t[1] - 1))
                sched[sI] = items
            fill(0, p.NW - 1, 2, 2)
            fill(1, p.NW, 2, 2)
            for m in range(1, 10): fill(2*m, 2*m + p.NW - 1, m + p.NX - 1, 4)
            bars = [-1, 0, 1] + [2*m for m in range(1, 10)]
            def need_at(sI):
                if sI == 0: return {('W', 2), ('x', 1)}
                m = sI // 2 if sI >= 2 else 0
                n = {('W', k) for k in range(2*m + 2, min(2*m + 5, 20))} | {('x', d) for d in (m + 1, m + 2) if d < 10}
                return n
        assert not wq and not xq, (wq, xq)
        dt_done = [False]
        for sI in bars:
            if sI == -1: stamp(a, p, 4)
            for it in sched[sI]:
                if sI == -1 and it[0] != 'x' and it[1] >= 2 and not dt_done[0]:
                    dtable(); dt_done[0] = True
                if sI == -1 and it[0] == 'x' and it[1] >= 1 and not dt_done[0]:
                    dtable(); dt_done[0] = True
                if it[0] == 'W': dma_w(it[1], first=(it[1] == 0))
                else: dma_x(it[1], it[2])
            if sI == -1 and not dt_done[0]:
                dtable(); dt_done[0] = True
            need = need_at(sI) if sI >= 0 else {('W', 0), ('W', 1), ('x', 0)}
            if sI == bars[-1]: need = set(vm.q)
            issued = set()
            for k in range(-1, sI + 1):
                for it in sched.get(k, []): issued.add((it[0], it[1]))
            for t in need: assert t in issued or sI == bars[-1], (sI, t)
            vm.wait(a, need)
            if sI == -1: stamp(a, p, 3)
            a("s_barrier")
            if sI == -1: stamp(a, p, 1)
        stamp(a, p, 2)
        a(f"s_mov_b32 s{S_NPRE}, {FLG(p, 'H')}")
        a("s_branch L2_p")

class VmTracker:
    def __init__(self): self.q = []
    def issue(self, tag, n=1): self.q.extend([tag]*n)
    def wait(self, a, tags):
        idx = -1
        for i, t in enumerate(self.q):
            if t in tags: idx = i
        if idx < 0: return
        n = len(self.q) - 1 - idx
        assert n <= 63
        a(f"s_waitcnt vmcnt({n})")
        self.q = self.q[idx+1:]

TSL = [20, 22, 34, 36, 38, 40, 72, 80, 82, 52]
def j2ks(p):
    if not p.staged: return ""
    t, r, sl, u = S_T0, S_CNT, 44, 45
    return f"""s_sub_u32 s{t}, s{S_T1}, 20
        s_lshr_b32 s{r}, s{t}, 3
        s_and_b32 s{sl}, s{t}, 7
        s_sub_u32 s{u}, s{t}, 40
        s_cmp_ge_u32 s{t}, 40
        s_cselect_b32 s{r}, 5, s{r}
        s_cselect_b32 s{sl}, s{u}, s{sl}
        s_cmp_ge_u32 s{S_T1}, 67
        s_cselect_b32 s{t}, 1, 0
        s_add_u32 s{r}, s{r}, s{t}
        s_mul_i32 s{t}, s{t}, 7
        s_sub_u32 s{sl}, s{sl}, s{t}
        s_mul_i32 s{sl}, s{sl}, 7
        s_add_u32 s{sl}, s{sl}, s{r}
        s_add_u32 s{sl}, s{sl}, 20
        s_cmp_lt_u32 s{S_T1}, 20
        s_cselect_b32 s{S_T1}, s{S_T1}, s{sl}"""
def ksmap(p):
    ks, _ = relayout_order(p)
    segs = []
    for j, k in enumerate(ks):
        if not segs or k - j != segs[-1][1]: segs.append([j, k - j])
    out = [f"s_mov_b32 s{S_T0}, {segs[-1][1]}"]
    for idx in range(len(segs) - 2, -1, -1):
        out.append(f"s_cmp_lt_u32 s{S_T1}, {segs[idx+1][0]}")
        out.append(f"s_cselect_b32 s{S_T0}, {segs[idx][1]}, s{S_T0}")
    out.append(f"s_add_u32 s{S_T1}, s{S_T1}, s{S_T0}")
    return "\n".join(out)
def utility(a, p):
    a.label("L_util")
    if p.prioU: a(f"s_setprio {p.prioU}")
    kwait(a, p, ('x', 'ws', 'dbg', 'w2'))
    stamp(a, p, 0)
    vm = VmTracker()
    X0 = 32
    LL = f"s[{S_SRD_L}:{S_SRD_L+3}]"
    RLR = [p.rlrole]
    a(f"""s_lshl_b32 s{S_T0}, s{S_RT}, 7
    s_lshl_b32 s{S_T2}, s{S_IDX}, 3
    s_add_u32 s{S_T0}, s{S_T0}, s{S_T2}
    v_lshrrev_b32 v8, 3, v0
    v_add_u32 v8, s{S_T0}, v8
    v_and_b32 v9, 7, v0
    v_mul_u32_u24 v10, {XPITCH}, v8
    v_lshl_add_u32 v10, v9, 4, v10""")
    for i in range(10):
        a(f"buffer_load_dwordx4 v[{X0+4*i}:{X0+4*i+3}], v10, {XS}, 0 offen offset:{128*i}")
    vm.issue('st', 10)
    a(f"v_lshlrev_b32 v11, 2, v8\nv_add_u32 v11, {ST_OFF}, v11")
    if p.codepf:
        a(f"""s_and_b32 s{S_T0}, s{S_LI}, 7
        s_lshl_b32 s{S_T0}, s{S_T0}, 13
        v_lshlrev_b32 v15, 7, v0
        v_add_u32 v15, s{S_T0}, v15
        s_mov_b32 s{S_T1}, L_text_end-L_text_begin-4
        v_min_u32 v15, s{S_T1}, v15
        v_and_b32 v15, 0xfffffffc, v15
        global_load_dword v29, v15, s[{S_PC}:{S_PC+1}]""")
        vm.issue('code')
    if p.tlbtouch:
        a(f"""v_lshlrev_b32 v15, 21, v0
        v_cmp_gt_u32 vcc, 13, v0
        v_mov_b32 v16, {OOB}
        s_nop 0
        v_cndmask_b32 v15, v16, v15, vcc
        buffer_load_dword v124, v15, {WSR}, 0 offen""")
        vm.issue('tlb')
        srd(a, S_SRD_L, S_OUTP, S_OUTP+1, 2048*1280)
        a(f"""v_lshlrev_b32 v15, 21, v0
        v_cmp_gt_u32 vcc, 2, v0
        s_nop 1
        v_cndmask_b32 v15, v16, v15, vcc
        buffer_load_dword v125, v15, s[{S_SRD_L}:{S_SRD_L+3}], 0 offen""")
        vm.issue('tlb')
    SU = 66
    def rl_setup():
        a(f"""v_lshrrev_b32 v72, 3, v0
        v_lshrrev_b32 v73, 4, v0
        v_lshlrev_b32 v73, 1, v73
        v_and_b32 v74, 7, v0
        v_xor_b32 v74, v74, v73
        v_mul_u32_u24 v72, 1280, v72
        v_lshl_add_u32 v76, v74, 4, v72
        v_add_u32 v77, {8*1280}, v76
        v_add_u32 v78, {16*1280}, v76
        v_add_u32 v79, {24*1280}, v76
        s_lshl_b32 s{S_T3}, s{S_RT}, 3
        s_add_u32 s{S_T3}, s{S_T3}, s{S_COL}""")
    def rl_setup2():
        a(f"""v_lshrrev_b32 v72, 2, v0
        v_bfe_u32 v73, v0, 3, 2
        v_lshlrev_b32 v73, 1, v73
        v_bfe_u32 v74, v0, 1, 1
        v_and_b32 v75, 1, v0
        v_lshlrev_b32 v72, 7, v72
        v_lshl_add_u32 v72, v75, 3, v72
        v_lshl_add_u32 v72, v74, 4, v72""")
        for q in range(4):
            a(f"v_xor_b32 v74, {2*q}, v73\nv_lshl_add_u32 v{80+q}, v74, 4, v72")
        a("v_lshlrev_b32 v84, 4, v0")
    def SI(n): return 4 + n if n < 4 else 31 + (n - 4)
    SPR = [33, 42, 43, 46, 47, 51]
    def SP(n): return SPR[n]
    def rl_issue(n):
        so, si = SU + n, SI(n)
        a(f"""s_add_u32 s{S_T4}, s{S_T3}, {128*n}
        s_mul_i32 s{S_T1}, s{S_T4}, 6554
        s_lshr_b32 s{S_T1}, s{S_T1}, 16
        s_mul_i32 s{S_T0}, s{S_T1}, 10
        s_sub_u32 s{S_T2}, s{S_T4}, s{S_T0}
        {ksmap(p)}
        s_lshl_b32 s{S_T0}, s{S_T2}, 2
        s_mul_i32 s{so}, s{S_T0}, 13108
        s_lshr_b32 s{so}, s{so}, 16
        s_mul_i32 s{S_T5}, s{so}, 5
        s_sub_u32 s{si}, s{S_T0}, s{S_T5}
        s_mul_i32 s{so}, s{so}, 74
        s_add_u32 s{so}, s{so}, s{S_T1}
        s_mul_i32 s{so}, s{so}, 5120
        s_lshl_b32 s{S_T0}, s{si}, 10
        s_add_u32 s{so}, s{so}, s{S_T0}
        s_add_u32 s{so}, s{so}, {BF_OFF}
        s_cmp_ge_u32 s{S_T4}, 740
        s_cselect_b32 s{so}, {OOB}, s{so}
        s_cselect_b32 s{S_T5}, {OOB}, 0
        {j2ks(p)}
        s_mul_i32 s{S_T0}, s{S_T1}, 13108
        s_lshr_b32 s{S_T0}, s{S_T0}, 16
        s_mul_i32 s{S_T0}, s{S_T0}, 5
        s_sub_u32 s{S_T0}, s{S_T1}, s{S_T0}             ; ks % 5
        s_cmp_eq_u32 s{S_T0}, 2
        s_cselect_b32 s{S_T0}, 1, 0
        s_cmp_lt_u32 s{S_T1}, 20
        s_cselect_b32 s{SP(n)}, s{S_T0}, 0
        s_cselect_b32 s{S_SRD_L}, s{S_WOP}, s{S_W2P}
        s_cselect_b32 s{S_SRD_L+1}, s{S_WOP+1}, s{S_W2P+1}
        s_mov_b32 s{S_T0}, {1728*1280}
        s_cselect_b32 s{S_SRD_L+2}, {640*1280}, s{S_T0}
        s_cselect_b32 s{S_T0}, 0, 20
        s_and_b32 s{S_SRD_L+1}, s{S_SRD_L+1}, 0xffff
        s_mov_b32 s{S_SRD_L+3}, 0x20000
        s_sub_u32 s{S_T0}, s{S_T1}, s{S_T0}
        s_mul_i32 s{S_T0}, s{S_T0}, {32*1280}
        s_lshl_b32 s{S_T2}, s{S_T2}, 7
        s_add_u32 s{S_T0}, s{S_T0}, s{S_T2}
        s_add_u32 s{S_T0}, s{S_T0}, s{S_T5}""")
        for i in range(4):
            a(f"""s_mov_b32 m0, {RLADDR(p, RLR[0], n) + i*1024}
            s_nop 0
            buffer_load_dwordx4 v{76+i}, {LL}, s{S_T0} offen lds""")
        vm.issue(('rl', n), 4)
    def rl_read(n):
        vm.wait(a, {('rl', n)})
        D0 = 88 + 16*(n & 1)
        base = RLADDR(p, RLR[0], n)
        lsp = a.newlabel("L_rlsp"); ldn = a.newlabel("L_rldn")
        a(f"s_cmp_eq_u32 s{SP(n)}, 1\ns_cbranch_scc1 {lsp}")
        for q in range(4): a(f"v_add_u32 v{120+q}, {base}, v{80+q}")
        for q in range(4):
            d = D0 + 4*q
            a(f"ds_read_b64_tr_b16 v[{d}:{d+1}], v{120+q}")
            a(f"ds_read_b64_tr_b16 v[{d+2}:{d+3}], v{120+q} offset:2048")
        a(f"s_branch {ldn}")
        a.label(lsp)
        a(f"""v_lshrrev_b32 v124, 4, v0
        v_and_b32 v125, 1, v124
        v_lshrrev_b32 v124, 1, v124
        v_lshl_add_u32 v124, v125, 1, v124
        v_bfe_u32 v125, v0, 2, 2
        v_lshl_add_u32 v124, v124, 3, v125
        v_lshlrev_b32 v124, 7, v124
        v_and_b32 v126, 1, v0
        v_lshl_add_u32 v124, v126, 3, v124
        v_add_u32 v124, {base}, v124
        v_lshrrev_b32 v125, 1, v125
        v_lshlrev_b32 v125, 1, v125
        v_bfe_u32 v126, v0, 1, 1""")
        for q in range(4):
            d = D0 + 4*q
            a(f"""v_add_u32 v127, {2*q}, v126
            v_xor_b32 v128, v127, v125
            v_lshl_add_u32 v128, v128, 4, v124
            ds_read_b64_tr_b16 v[{d}:{d+1}], v128
            v_xor_b32 v129, 4, v125
            v_xor_b32 v129, v127, v129
            v_lshl_add_u32 v129, v129, 4, v124
            ds_read_b64_tr_b16 v[{d+2}:{d+3}], v129 offset:512""")
        a.label(ldn)
    def rl_store(n):
        so, si = SU + n, SI(n)
        D0 = 88 + 16*(n & 1)
        a(f"s_movk_i32 s{S_T2}, 0x400\ns_waitcnt lgkmcnt(0)")
        for q in range(4):
            d = D0 + 4*q
            a(f"buffer_store_dwordx4 v[{d}:{d+3}], v84, {WSR}, s{so} offen {p.stflags}")
            if q < 3:
                a(f"""s_cmp_eq_u32 s{si}, 4
                s_cselect_b32 s{S_T0}, {74*5120 - 4096}, s{S_T2}
                s_cselect_b32 s{si}, -1, s{si}
                s_add_u32 s{so}, s{so}, s{S_T0}
                s_add_u32 s{si}, s{si}, 1""")
        vm.issue(('rs', n), 4)
    def stats_compute():
        vm.wait(a, {'st'})
        a(f"""v_mov_b32 v28, 0x3f803f80
        v_mov_b32 v24, 0
        v_mov_b32 v25, 0
        v_mov_b32 v26, 0
        v_mov_b32 v27, 0""")
        for i in range(40):
            a(f"v_dot2_f32_bf16 v{24+(i&1)}, v{X0+i}, v28, v{24+(i&1)}")
            a(f"v_dot2_f32_bf16 v{26+(i&1)}, v{X0+i}, v{X0+i}, v{26+(i&1)}")
        a("s_nop 2\nv_add_f32 v24, v24, v25\nv_add_f32 v26, v26, v27")
        for mod in ("quad_perm:[1,0,3,2]", "quad_perm:[2,3,0,1]", "row_half_mirror"):
            a(f"v_add_f32_dpp v24, v24, v24 {mod} row_mask:0xf bank_mask:0xf")
            a(f"v_add_f32_dpp v26, v26, v26 {mod} row_mask:0xf bank_mask:0xf")
        a(f"""v_mul_f32 v24, {f2u(1/640.):#x}, v24
        v_mul_f32 v26, {f2u(1/640.):#x}, v26
        v_fma_f32 v26, -v24, v24, v26
        v_max_f32 v26, 0, v26
        v_add_f32 v26, {f2u(EPS):#x}, v26
        v_rsq_f32 v26, v26
        s_mov_b32 exec_lo, 0x01010101
        s_mov_b32 exec_hi, 0x01010101
        buffer_store_dword v24, v11, {WSR}, 0 offen {p.stflags}
        v_add_u32 v11, 8192, v11
        buffer_store_dword v26, v11, {WSR}, 0 offen {p.stflags}
        s_mov_b64 exec, -1""")
        vm.issue('sts', 2)
    def atomic(slot, rt_s):
        a(f"""v_mov_b32 v8, 1
        s_lshl_b32 s{S_T0}, s{rt_s}, 4
        s_add_u32 s{S_T0}, s{S_T0}, {4*slot}
        v_mov_b32 v9, s{S_T0}
        s_mov_b64 exec, 1
        buffer_atomic_add v8, v9, {DBG}, 0 offen sc1
        s_mov_b64 exec, -1""")
        vm.issue('atom')
    def spin(vaddr, vthr, vval, first_tag, sleep=4, srd_=None, x2=False):
        srd_ = srd_ or DBG
        lp = a.newlabel("L_poll"); lk = a.newlabel("L_pollok")
        vm.wait(a, {first_tag})
        a(f"s_mov_b32 s{S_CNT}, 0")
        a.label(lp)
        if x2: a(f"v_min_u32 v{vval}, v{vval}, v{vval+1}")
        ld = f"buffer_load_dwordx2 v[{vval}:{vval+1}]" if x2 else f"buffer_load_dword v{vval}"
        a(f"""v_cmp_ge_u32 vcc, v{vval}, v{vthr}
        s_nop 4
        s_cmp_eq_u64 vcc, -1
        s_cbranch_scc1 {lk}
        s_add_u32 s{S_CNT}, s{S_CNT}, 1
        s_cmp_ge_u32 s{S_CNT}, 0x40000
        s_cbranch_scc1 {lk}
        s_sleep {sleep}
        {ld}, v{vaddr}, {srd_}, 0 offen sc1
        s_waitcnt vmcnt(0)
        s_branch {lp}""")
        a.label(lk)
    def flag_store(kind, val):
        if kind == 'hq':
            a(f"""s_lshl_b32 s{S_T0}, s{S_RT}, 4
            s_add_u32 s{S_T0}, s{S_T0}, s{S_IDX}
            s_lshl_b32 s{S_T0}, s{S_T0}, 7
            s_add_u32 s{S_T0}, s{S_T0}, {FL_OFF}""")
        else:
            a(f"""s_lshl_b32 s{S_T0}, s{S_RT}, 3
            s_add_u32 s{S_T0}, s{S_T0}, s{S_COL}
            s_lshl_b32 s{S_T0}, s{S_T0}, {2 if (kind == 'fb2' and p.fb2dense) else 7}
            s_add_u32 s{S_T0}, s{S_T0}, {FL_OFF + 65536 + (16384 if kind == 'fb2' else 0)}""")
        a(f"""v_mov_b32 v8, {val}
        v_mov_b32 v9, 0
        s_mov_b64 exec, 1
        buffer_store_dword v8, v9, {WSR}, s{S_T0} offen {p.stflags}
        s_mov_b64 exec, -1""")
        vm.issue('fl')
    for role in ('Q', 'H'):
        H = role == 'H'
        ST_ = STAT(p, role)
        if role == 'Q':
            q_pre = list(vm.q)
            a(f"s_cmp_eq_u32 s{S_ROLE}, 0\ns_cbranch_scc0 L_utilH")
        else:
            vm.q = list(q_pre)
            a.label("L_utilH")
        a(f"v_mov_b32 v30, {FLG(p, role)}\nv_mov_b32 v31, 0\nds_write_b32 v30, v31")
        if H and p.rlmode == 'early':
            rl_setup()
            for n in range(6): rl_issue(n)
            rl_setup2()
        flag_store('hq', 0)
        if H and (p.staged or p.wflags):
            a(f"""s_lshl_b32 s{S_T0}, s{S_RT}, 3
            s_add_u32 s{S_T0}, s{S_T0}, s{S_COL}
            s_mul_i32 s{S_T0}, s{S_T0}, {12*128}
            s_add_u32 s{S_T0}, s{S_T0}, {FL2_OFF}
            v_lshlrev_b32 v9, 7, v0
            v_mov_b32 v8, 0
            s_mov_b64 exec, 0xfff
            buffer_store_dword v8, v9, {WSR}, s{S_T0} offen {p.stflags}
            s_mov_b64 exec, -1""")
            vm.issue('fl')
        RLW = (role == p.rlrole)
        if RLW: flag_store('fb', 0); flag_store('fb2', 0)
        stats_compute()
        a("s_waitcnt lgkmcnt(0)")
        stamp(a, p, 3)
        a("s_barrier")
        stamp(a, p, 1)
        acts = {s: [] for s in range(20)}
        def atom_stats():
            vm.wait(a, {'sts'}); atomic(0, S_RT)
        acts[2].append(atom_stats)
        def atom_fb():
            vm.wait(a, {('rs', 5)}); flag_store('fb', 1)
        if H and p.rlmode == 'early':
            for n in range(6):
                acts[1 + n].append(lambda n=n: rl_store(n))
                acts[0 + n].append(lambda n=n: rl_read(n))
            acts[p.fbstep].append(atom_fb)
        if H and p.rlmode == 'mid':
            r0 = p.rlstep
            acts[r0 - 2].append(rl_setup); acts[r0 - 1].append(rl_setup2)
            acts[r0].append(lambda: [rl_issue(n) for n in range(3)])
            acts[r0 + 1].append(lambda: [rl_issue(n) for n in range(3, 6)])
            for k in range(3):
                acts[r0 + 4 + k].append(lambda k=k: (rl_read(2*k), rl_read(2*k + 1)))
                acts[r0 + 5 + k].insert(0, lambda k=k: (rl_store(2*k), rl_store(2*k + 1)))
            acts[min(r0 + 9, 19)].append(atom_fb)
        if H and p.rlmode == 'tail':
            acts[5].append(rl_setup); acts[6].append(rl_setup2)
            acts[16].append(lambda: [rl_issue(n) for n in range(3)])
            acts[17].append(lambda: [rl_issue(n) for n in range(3, 6)])
        if RLW and p.rlmode == 'split':
            NE = p.rlNE; r0 = p.rlstep
            acts[r0 - 2].append(rl_setup); acts[r0 - 1].append(rl_setup2)
            acts[r0].append(lambda: [rl_issue(n) for n in range(NE)])
            for n in range(NE):
                acts[r0 + 4 + n].append(lambda n=n: rl_read(n))
                acts[r0 + 5 + n].insert(0, lambda n=n: rl_store(n))
            def fb1():
                vm.wait(a, {('rs', NE - 1)}); flag_store('fb', 1)
            acts[r0 + 7 + NE].append(fb1)
            if H:
                acts[16].append(lambda: [rl_issue(n) for n in range(NE, NE + 2)])
                acts[17].append(lambda: [rl_issue(n) for n in range(NE + 2, 6)])
            else:
                acts[18].append(lambda: [rl_issue(n) for n in range(NE, NE + 2)])
                acts[19].append(lambda: [rl_issue(n) for n in range(NE + 2, 6)])
        def poll1_issue():
            a(f"""v_lshlrev_b32 v17, 4, v0
            v_mov_b32 v18, 16
            v_mov_b32 v22, 0
            v_cmp_lt_u32 vcc, 15, v0
            s_nop 1
            v_cndmask_b32 v18, v18, v22, vcc
            buffer_load_dword v19, v17, {DBG}, 0 offen sc1""")
            vm.issue('poll')
        def poll1_check():
            spin(17, 18, 19, 'poll', 4)
            a(f"s_lshl_b32 s{S_T0}, s{S_RT}, 7")
            if not H: a(f"s_sub_u32 s{S_T0}, s{S_T0}, 16")
            for k in range(3 if not H else 2):
                a(f"""v_add_u32 v15, {64*k}, v0
                v_add_u32 v15, s{S_T0}, v15
                v_max_i32 v15, 0, v15
                v_min_i32 v15, 2047, v15
                v_lshlrev_b32 v15, 2, v15
                v_add_u32 v15, {ST_OFF}, v15
                buffer_load_dword v{40+k}, v15, {WSR}, 0 offen sc1
                v_add_u32 v15, 8192, v15
                buffer_load_dword v{44+k}, v15, {WSR}, 0 offen sc1""")
                vm.issue('sl', 2)
        acts[p.pollstep].append(poll1_issue)
        acts[p.pollstep + 2].append(poll1_check)
        if p.fbmode == 'tail17':
            def fb_issue():
                a(f"""v_lshlrev_b32 v48, 7, v0
                v_add_u32 v48, {FL_OFF + 65536}, v48
                v_add_u32 v49, 8192, v48
                buffer_load_dword v50, v48, {WSR}, 0 offen sc1
                buffer_load_dword v51, v49, {WSR}, 0 offen sc1""")
                vm.issue('fb', 2)
            def fb_check():
                lp = a.newlabel("L_fb"); lk = a.newlabel("L_fbok")
                vm.wait(a, {'fb'})
                a(f"s_mov_b32 s{S_CNT}, 0")
                a.label(lp)
                a(f"""v_min_u32 v50, v50, v51
                v_cmp_le_u32 vcc, 1, v50
                s_nop 4
                s_cmp_eq_u64 vcc, -1
                s_cbranch_scc1 {lk}
                s_add_u32 s{S_CNT}, s{S_CNT}, 1
                s_cmp_ge_u32 s{S_CNT}, 0x40000
                s_cbranch_scc1 {lk}
                s_sleep {p.sleepB}
                buffer_load_dword v50, v48, {WSR}, 0 offen sc1
                buffer_load_dword v51, v49, {WSR}, 0 offen sc1
                s_waitcnt vmcnt(0)
                s_branch {lp}""")
                a.label(lk)
                a("v_mov_b32 v31, 1\nds_write_b32 v30, v31\ns_waitcnt lgkmcnt(0)")
                stamp(a, p, 3)
            acts[p.pollstep + 2].append(fb_issue)
            post_loop = [fb_check]
        else:
            post_loop = []
        for s in range(20):
            if p.stamps and not p.p2stamps and s % 2 == 0: a(f"s_memtime s[{TSL[s//2]}:{TSL[s//2]+1}]")
            for f in acts[s]: f()
            if not p.dbar or s == 0 or s % 2 == 1: a("s_barrier")
        vm.wait(a, {'sl'})
        a(f"v_lshlrev_b32 v15, 2, v0\nv_add_u32 v15, {ST_}, v15")
        for k in range(3 if not H else 2):
            if k == 2: a("s_mov_b64 exec, 0xffff")
            a(f"ds_write_b32 v15, v{40+k} offset:{256*k}")
            a(f"ds_write_b32 v15, v{44+k} offset:{576 + 256*k}")
        a("s_mov_b64 exec, -1\ns_waitcnt lgkmcnt(0)\ns_barrier")
        for f in post_loop: f()
        stamp(a, p, 2)
        a(f"""s_lshr_b32 s{S_T3}, s{S_RT2}, 1
        s_lshl_b32 s{S_T3}, s{S_T3}, 4
        s_mov_b32 s{S_STG}, s{S_T3}""")
        def poll_FB(sleep):
            lp = a.newlabel("L_fb"); lk = a.newlabel("L_fbok")
            a(f"""v_lshlrev_b32 v17, 7, v0
            v_add_u32 v17, {FL_OFF + 65536}, v17
            v_add_u32 v16, 8192, v17
            s_mov_b32 s{S_CNT}, 0""")
            a.label(lp)
            a(f"""buffer_load_dword v20, v17, {WSR}, 0 offen sc1
            buffer_load_dword v21, v16, {WSR}, 0 offen sc1
            s_waitcnt vmcnt(0)
            v_min_u32 v20, v20, v21
            v_cmp_le_u32 vcc, 1, v20
            s_nop 4
            s_cmp_eq_u64 vcc, -1
            s_cbranch_scc1 {lk}
            s_add_u32 s{S_CNT}, s{S_CNT}, 1
            s_cmp_ge_u32 s{S_CNT}, 0x40000
            s_cbranch_scc1 {lk}
            s_sleep {sleep}
            s_branch {lp}""")
            a.label(lk)
            vm.q = []
        def hq_setup(first):
            a(f"""s_lshr_b32 s{S_T0}, s{S_RT2}, 1
            s_lshl_b32 s{S_T0}, s{S_T0}, 4
            s_add_u32 s{S_T0}, s{S_T0}, {first}
            s_lshl_b32 s{S_T0}, s{S_T0}, 7
            s_add_u32 s{S_T0}, s{S_T0}, {FL_OFF}
            v_lshlrev_b32 v17, 7, v0
            v_add_u32 v17, s{S_T0}, v17
            v_mov_b32 v18, 1
            v_mov_b32 v22, 0
            v_mov_b32 v23, {OOB}
            v_cmp_lt_u32 vcc, 7, v0
            s_nop 1
            v_cndmask_b32 v18, v18, v22, vcc
            v_cndmask_b32 v17, v17, v23, vcc""")
        def set_flag(v):
            a(f"v_mov_b32 v31, {v}\nds_write_b32 v30, v31\ns_waitcnt lgkmcnt(0)")
        def poll_pipelined(depth):
            lp = a.newlabel("L_pp"); lk = a.newlabel("L_ppok")
            a("s_waitcnt vmcnt(0)")
            vm.q = []
            for k in range(depth): a(f"buffer_load_dword v{24+k}, v17, {WSR}, 0 offen sc1\ns_sleep {p.ppgap}")
            a(f"s_mov_b32 s{S_CNT}, 0")
            a.label(lp)
            for k in range(depth):
                a(f"""s_waitcnt vmcnt({depth-1})
                v_cmp_ge_u32 vcc, v{24+k}, v18
                s_nop 4
                s_cmp_eq_u64 vcc, -1
                s_cbranch_scc1 {lk}
                buffer_load_dword v{24+k}, v17, {WSR}, 0 offen sc1
                s_sleep {p.ppgap}""")
            a(f"""s_add_u32 s{S_CNT}, s{S_CNT}, 1
            s_cmp_lt_u32 s{S_CNT}, 0x10000
            s_cbranch_scc1 {lp}""")
            a.label(lk)
        def need_mask(slices):
            m = sum((3 << (2*x)) if p.wflags else (1 << x) for x in slices)
            a(f"""s_mov_b32 s{S_T0}, {m}
            s_mov_b32 s{S_T1}, 0
            v_mov_b32 v18, 1
            v_cndmask_b32 v18, v22, v18, s[{S_T0}:{S_T1}]""".replace(f"s[{S_T0}:{S_T1}]", "s[28:29]").replace(f"s_mov_b32 s{S_T0}, {m}\n", f"s_mov_b32 s28, {m}\n").replace(f"s_mov_b32 s{S_T1}, 0", "s_mov_b32 s29, 0"))
        if H:
            if p.rlmode == 'tail':
                for n in range(6):
                    rl_read(n); rl_store(n)
                atom_fb()
            if p.rlmode == 'split' and RLW:
                for n in range(p.rlNE, 6):
                    rl_read(n); rl_store(n)
                vm.wait(a, {('rs', 5)}); flag_store('fb2', 1)
            a("s_barrier")
            if p.stamps: a("s_memrealtime s[12:13]")
            if not (p.staged or p.wflags): flag_store('hq', 1)
            stamp(a, p, 6)
        else:
            a("s_barrier")
            stamp(a, p, 6)
            if p.rlmode == 'split' and RLW:
                for n in range(p.rlNE, 6):
                    rl_read(n); rl_store(n)
        if p.fbmode != 'tail17':
            poll_FB(p.sleepB); set_flag(1)
            stamp(a, p, 3)
        delay = p.predelayH if H else p.predelayQ
        if delay: a(f"s_sleep {delay}")
        def st_setup(grp):
            a(f"""s_lshr_b32 s{S_T0}, s{S_RT2}, 1
            s_lshl_b32 s{S_T0}, s{S_T0}, 5
            s_and_b32 s{S_T1}, s{S_RT2}, 1
            s_lshl_b32 s{S_T1}, s{S_T1}, 1
            s_add_u32 s{S_T0}, s{S_T0}, s{S_T1}
            s_mul_i32 s{S_T0}, s{S_T0}, {3*128}
            s_add_u32 s{S_T0}, s{S_T0}, {FL2_OFF + grp*128}
            v_lshrrev_b32 v17, 1, v0
            v_lshlrev_b32 v17, 2, v17
            v_and_b32 v18, 1, v0
            v_add_u32 v17, v17, v18
            v_mul_u32_u24 v17, {3*128}, v17
            v_add_u32 v17, s{S_T0}, v17
            v_mov_b32 v18, 1
            v_mov_b32 v22, 0
            v_mov_b32 v23, {OOB}
            v_cmp_lt_u32 vcc, 15, v0
            s_nop 1
            v_cndmask_b32 v18, v18, v22, vcc
            v_cndmask_b32 v17, v17, v23, vcc""")
        if p.staged:
            st_setup(0); req = set(range(8))
        elif p.wflags:
            st_setup(0); req = set().union(*[slices_of(p, role, q) for q in range(p.NS2 - 1)]); need_mask(req)
        else:
            hq_setup(8); req = set().union(*[slices_of(p, role, q) for q in range(p.NS2 - 1)]); need_mask(req)
        a(f"buffer_load_dword v19, v17, {WSR}, 0 offen sc1"); vm.issue('pp')
        if (not H) and p.rlmode == 'split' and RLW:
            vm.wait(a, {'pp'}); flag_store('fb2', 1); vm.issue('pp0')
            spin(17, 18, 19, 'none', p.sleepA, WSR)
        elif p.ppdepth and (H or p.ppQ):
            lp = a.newlabel("L_pp"); lk = a.newlabel("L_ppok")
            regs = [19, 24, 25, 26][:p.ppdepth]
            for r in regs[1:]:
                a(f"s_sleep {p.ppgap}\nbuffer_load_dword v{r}, v17, {WSR}, 0 offen sc1")
            a(f"s_mov_b32 s{S_CNT}, 0")
            a.label(lp)
            for r in regs:
                a(f"""s_waitcnt vmcnt({p.ppdepth - 1})
                v_cmp_ge_u32 vcc, v{r}, v18
                s_nop 4
                s_cmp_eq_u64 vcc, -1
                s_cbranch_scc1 {lk}
                s_sleep {p.ppgap}
                buffer_load_dword v{r}, v17, {WSR}, 0 offen sc1""")
            a(f"""s_add_u32 s{S_CNT}, s{S_CNT}, 1
            s_cmp_lt_u32 s{S_CNT}, 0x10000
            s_cbranch_scc1 {lp}""")
            a.label(lk)
            vm.q = ['stale'] * 4
        else:
            spin(17, 18, 19, 'pp', p.sleepA, WSR)
        if p.stamps: a("s_memrealtime s[14:15]")
        set_flag(2)
        stamp(a, p, 4)
        a("s_barrier")
        gates = {}
        for q in range(p.NS2 - 1, 27):
            sl = slices_of(p, role, q)
            if not sl <= req:
                req = req | sl
                gates[q - p.NS2] = set(req)
        if p.staged: gates = {}
        first_gate = min(gates) if gates else None
        sgates = {8 - p.NS2: 1, 20 - p.NS2: 2} if p.staged else {}
        S_DONE = 31
        a(f"s_mov_b32 s{S_DONE}, 0")
        for i in range(NSTG):
            if p.stamps and p.p2stamps and i % 4 == 0: a(f"s_memtime s[{TSL[i//4]}:{TSL[i//4]+1}]")
            if i == (p.ostiter + p.fqiter + 1 if p.latestore else 3) and not H: flag_store('hq', 1)
            if i + 2 in gates or (i == 0):
                pass
            if gates and i == max(first_gate - 2, 0) and first_gate > 0:
                a(f"buffer_load_dword v19, v17, {WSR}, 0 offen sc1"); vm.issue('g')
            if i in gates:
                lb = a.newlabel("L_gate")
                a(f"s_cmp_eq_u32 s{S_DONE}, 1\ns_cbranch_scc1 {lb}")
                if i != first_gate or first_gate == 0: a(f"buffer_load_dword v19, v17, {WSR}, 0 offen sc1\ns_waitcnt vmcnt(0)")
                else: a("s_waitcnt vmcnt(0)")
                need_mask(gates[i])
                a_q = list(vm.q); vm.q = []
                spin(17, 18, 19, 'none', 4, WSR)
                a(f"""v_cmp_le_u32 vcc, 1, v19
                s_nop 4
                s_and_b32 s{S_T0}, vcc_lo, {0xffff if p.wflags else 0xff}
                s_cmp_eq_u32 s{S_T0}, {0xffff if p.wflags else 0xff}
                s_cselect_b32 s{S_DONE}, 1, 0""")
                a.label(lb)
            if i + 3 in sgates:
                st_setup(sgates[i + 3])
                a(f"buffer_load_dword v19, v17, {WSR}, 0 offen sc1"); vm.issue('sg')
            if i in sgates:
                a("s_waitcnt vmcnt(0)"); vm.q = []
                spin(17, 18, 19, 'none', 4, WSR)
            if p.rlmode == 'split':
                qf = relayout_order(p)[1]
                gi = max(qf - p.NS2, 0)
                if p.fb2dense:
                    ldi = f"buffer_load_dwordx2 v[50:51], v48, {WSR}, 0 offen sc1"
                else:
                    ldi = f"buffer_load_dword v50, v48, {WSR}, 0 offen sc1\nbuffer_load_dword v51, v49, {WSR}, 0 offen sc1"
                if i == max(gi - 3, 0) :
                    a(f"""v_lshlrev_b32 v48, {3 if p.fb2dense else 7}, v0
                    v_add_u32 v48, {FL_OFF + 65536 + 16384}, v48
                    v_add_u32 v49, 8192, v48
                    {ldi}""")
                    vm.issue('fb2', 2)
                if i == gi:
                    lp = a.newlabel("L_fb2"); lk = a.newlabel("L_fb2ok")
                    a("s_waitcnt vmcnt(0)"); vm.q = []
                    a(f"s_mov_b32 s{S_CNT}, 0")
                    a.label(lp)
                    a(f"""v_min_u32 v50, v50, v51
                    v_cmp_le_u32 vcc, 1, v50
                    s_nop 4
                    s_cmp_eq_u64 vcc, -1
                    s_cbranch_scc1 {lk}
                    s_add_u32 s{S_CNT}, s{S_CNT}, 1
                    s_cmp_ge_u32 s{S_CNT}, 0x40000
                    s_cbranch_scc1 {lk}
                    s_sleep {p.sleepB}
                    {ldi}
                    s_waitcnt vmcnt(0)
                    s_branch {lp}""")
                    a.label(lk)
            if i == p.qpoll - 1: hq_setup(0)
            if i == p.qpoll:
                a(f"buffer_load_dword v19, v17, {WSR}, 0 offen sc1"); vm.issue('poll3')
            if i == p.qpoll + 2:
                spin(17, 18, 19, 'poll3', 8, WSR)
            a("s_barrier")
        stamp(a, p, 5)
        if p.stamps:
            a(f"""s_waitcnt lgkmcnt(0)
            s_lshl_b32 s{S_T1}, s2, 6
            s_add_u32 s{S_T1}, s{S_T1}, {TS_OFF + (2<<20)}
            v_mov_b32 v12, 0""")
            for i in range(10):
                a(f"v_mov_b32 v8, s{TSL[i]}\nbuffer_store_dword v8, v12, {WSR}, s{S_T1} offen offset:{4*i}\ns_nop 1")
            a(f"v_mov_b32 v8, s{S_TSA}\nbuffer_store_dword v8, v12, {WSR}, s{S_T1} offen offset:40\ns_nop 1")
            a(f"v_mov_b32 v8, s{S_TSA+4}\nbuffer_store_dword v8, v12, {WSR}, s{S_T1} offen offset:44\ns_nop 1")
            a(f"v_mov_b32 v8, s12\nbuffer_store_dword v8, v12, {WSR}, s{S_T1} offen offset:48\ns_nop 1")
            a(f"v_mov_b32 v8, s14\nbuffer_store_dword v8, v12, {WSR}, s{S_T1} offen offset:52\ns_nop 1")
        write_stamps(a, p, 7, 0)
        a("s_endpgm")

K2_LDS = 39; K2_STG = 41
K2_OFF = 62
K2_STR = 68
K2_SRD_O = 12
NSTG = 37
def stage_of(p, role, i):
    if p.swapq and role == 'Q':
        i = (i ^ 1) if i < 26 else (i if i == 26 else ((i - 27) ^ 1) + 27)
        return 10 + i if i < 27 else i - 27
    if not p.twogroup or role == 'H': return 10 + i if i < 27 else i - 27
    if i < 14: return 23 + i
    if i < 27: return i - 4
    if i < 32: return i - 22
    return i - 32
def slices_of(p, role, i):
    st = stage_of(p, role, i)
    if st < 10: return set()
    return {(2*st - 20)//7, (2*st + 1 - 20)//7}
def relayout_order(p):
    cov = (128*p.rlNE)//10
    if not p.twogroup:
        return [(j + 20) % 74 for j in range(74)], cov//2
    P_ = cov // 4
    ks = list(range(20, 20 + 2*P_)) + list(range(46, 46 + 2*P_)) + list(range(20 + 2*P_, 46)) + list(range(46 + 2*P_, 74)) + list(range(20))
    assert sorted(ks) == list(range(74))
    return ks, P_
def p2_producer(a, p):
    a.label("L2_p")
    if p.prioP2 is not None: a(f"s_setprio {p.prioP2}")
    sc = p.p2flags
    srd(a, S_SRD_WS, 70, 71, 1 << 28)
    a(f"""v_lshlrev_b32 v8, 4, v0
    s_sub_u32 s{S_T5}, s{S_WAVE}, 4
    s_mul_i32 s{S_T3}, s{S_RT2}, {74*4096}
    s_add_u32 s{S_T3}, s{S_T3}, {HF_OFF}
    s_mul_i32 s{S_T4}, s{S_CT2}, {74*5120}
    s_add_u32 s{S_T4}, s{S_T4}, {BF_OFF - 8192}
    s_mul_i32 s{S_T5}, s{S_T5}, 6""")
    for n in range(6):
        a(f"""s_add_u32 s{S_T0}, s{S_T5}, {n}
        s_lshl_b32 s{S_T1}, s{S_T0}, 10
        s_cmp_lt_u32 s{S_T0}, 8
        s_cselect_b32 s{K2_OFF+n}, s{S_T3}, s{S_T4}
        s_movk_i32 s{S_T2}, 0x2800
        s_cselect_b32 s{K2_STR+n}, 0x2000, s{S_T2}
        s_cselect_b32 s{74+n}, 1, 0
        s_add_u32 s{K2_OFF+n}, s{K2_OFF+n}, s{S_T1}""")
    a(f"""s_lshl_b32 s{S_T5}, s{S_T5}, 10
    s_add_u32 s{S_T4}, s{S_T5}, {p.NS2*p.SLOT}""")
    q = p.twogroup
    a(f"""s_cmp_eq_u32 s{S_ROLE}, 0
    s_cselect_b32 s80, {23 if q else 10}, 10
    s_cselect_b32 s81, {14 if q else 27}, 27
    s_cselect_b32 s82, {-4 if q else 10}, 10
    s_cselect_b32 s83, {-22 if q else -27}, -27
    s_cselect_b32 s60, {-32 if q else -27}, -27""".replace("-22, -27", "-22, s61").replace("-32, -27", "-32, s61").replace("-27, -27", "s61, s61").replace("s_cmp_eq_u32", "s_mov_b32 s61, -27\ns_cmp_eq_u32"))
    a(f"s_cmp_eq_u32 s{S_ROLE}, 0\ns_cselect_b32 s57, {1 if p.swapq else 0}, 0")
    def pro(kind):
        for i in range(p.NS2 - 1):
            for n in range(6):
                lb = a.newlabel("L2_pk")
                a(f"""s_cmp_eq_u32 s{74+n}, {1 if kind == 'A' else 0}
                s_cbranch_scc0 {lb}
                {f's_xor_b32 s{S_T2}, s57, {i}' if p.swapq else f's_mov_b32 s{S_T2}, {i}'}
                s_add_u32 s{S_T2}, s80, s{S_T2}
                s_mul_i32 s{S_T2}, s{S_T2}, s{K2_STR+n}
                s_add_u32 s{S_T2}, s{S_T2}, s{K2_OFF+n}
                s_add_u32 m0, s{S_T5}, {i*p.SLOT + n*1024}
                s_nop 0
                buffer_load_dwordx4 v8, {WSR}, s{S_T2} offen {sc} lds""")
                a.label(lb)
    a("s_barrier")
    a(f"""s_cmp_eq_u32 s{S_ROLE}, 0
    s_cselect_b32 s{S_T0}, {FLG(p, 'Q')}, s{S_NPRE}
    v_mov_b32 v9, s{S_T0}""")
    def wait_flag(v):
        lp = a.newlabel("L2_fl"); lk = a.newlabel("L2_flok")
        a(f"s_mov_b32 s{S_CNT}, 0")
        a.label(lp)
        a(f"""ds_read_b32 v10, v9
        s_waitcnt lgkmcnt(0)
        v_readfirstlane_b32 s{S_T0}, v10
        s_cmp_ge_u32 s{S_T0}, {v}
        s_cbranch_scc1 {lk}
        s_add_u32 s{S_CNT}, s{S_CNT}, 1
        s_cmp_ge_u32 s{S_CNT}, 0x400000
        s_cbranch_scc1 {lk}
        s_sleep {p.lsleep}
        s_branch {lp}""")
        a.label(lk)
    if p.fbmode == 'tail17':
        lq = a.newlabel("L2_q"); lj = a.newlabel("L2_j")
        a(f"s_cmp_eq_u32 s{S_ROLE}, 0\ns_cbranch_scc0 {lq}\ns_barrier")
        a.label(lq)
        wait_flag(1)
        pro('B')
        stamp(a, p, 1)
        a(f"s_cmp_eq_u32 s{S_ROLE}, 0\ns_cbranch_scc1 {lj}\ns_barrier")
        a.label(lj)
    else:
        a("s_barrier")
        wait_flag(1)
        pro('B')
    a(f"""s_mul_i32 s{S_T3}, s{S_RT2}, {74*4096}
    s_add_u32 s{S_T3}, s{S_T3}, {HF_OFF}
    s_lshl_b32 s{S_T1}, s80, 13
    s_add_u32 s{S_T3}, s{S_T3}, s{S_T1}""")
    if p.swapq:
        a(f"""s_lshl_b32 s{S_T1}, s57, 13
        s_add_u32 s59, s{S_T3}, s{S_T1}
        s_sub_u32 s56, s{S_T3}, s{S_T1}""")
    wait_flag(2)
    stamp(a, p, 5)
    pieces = [(pos, i) for pos in range(p.NS2 - 1) for i in range(8)]
    lend = a.newlabel("L2_aend")
    for w3 in range(3):
        ln = a.newlabel("L2_aw")
        if w3 < 2: a(f"s_cmp_eq_u32 s{S_WAVE}, {4 + w3}\ns_cbranch_scc0 {ln}")
        mine = [pc for k, pc in enumerate(pieces) if k % 3 == w3]
        for pos, i in mine:
            if p.swapq:
                a(f"""s_add_u32 s{S_T2}, s{59 if pos % 2 == 0 else 56}, {pos*8192 + i*1024}
                s_mov_b32 m0, {pos*p.SLOT + i*1024}
                s_nop 0
                buffer_load_dwordx4 v8, {WSR}, s{S_T2} offen {sc} lds""")
                continue
            a(f"""s_add_u32 s{S_T2}, s{S_T3}, {pos*8192 + i*1024}
            s_add_u32 m0, 0, {pos*p.SLOT + i*1024}
            s_nop 0
            buffer_load_dwordx4 v8, {WSR}, s{S_T2} offen {sc} lds""".replace("s_add_u32 m0, 0, ", "s_mov_b32 m0, "))
        late = sum(1 for pos, i in mine if pos >= 2)
        if w3 == 0: stamp(a, p, 6)
        a(f"s_waitcnt vmcnt({late})")
        if w3 < 2:
            a(f"s_branch {lend}")
            a.label(ln)
    a.label(lend)
    a("s_barrier")
    stamp(a, p, 3)
    a(f"""s_mov_b32 s{K2_STG}, {p.NS2 - 1}
    s_add_u32 s{K2_LDS}, s{S_T5}, {(p.NS2 - 1)*p.SLOT}
    s_mov_b32 s{S_CNT}, 0
    s_mov_b32 s{S_T3}, {OOB}""")
    a.label("L2_p_loop")
    if p.swapq:
        a(f"""s_xor_b32 s{S_T1}, s{K2_STG}, s57
        s_sub_u32 s{S_T2}, s{K2_STG}, 27
        s_xor_b32 s{S_T2}, s{S_T2}, s57
        s_add_u32 s{S_T2}, s{S_T2}, 27
        s_cmp_ge_u32 s{K2_STG}, 27
        s_cselect_b32 s{S_T1}, s{S_T2}, s{S_T1}
        s_cmp_eq_u32 s{K2_STG}, 26
        s_cselect_b32 s58, s{K2_STG}, s{S_T1}""")
    IDX = 58 if p.swapq else K2_STG
    a(f"""s_cmp_lt_u32 s{IDX}, 32
    s_cselect_b32 s{S_T0}, s83, s60
    s_cmp_lt_u32 s{IDX}, 27
    s_cselect_b32 s{S_T0}, s82, s{S_T0}
    s_cmp_lt_u32 s{IDX}, s81
    s_cselect_b32 s{S_T0}, s80, s{S_T0}
    s_add_u32 s{S_T0}, s{S_T0}, s{IDX}
    s_cmp_ge_u32 s{K2_STG}, {NSTG}
    s_cselect_b32 s{S_T1}, s{S_T3}, 0""")
    for n in range(6):
        a(f"""s_mul_i32 s{S_T2}, s{S_T0}, s{K2_STR+n}
        s_add_u32 s{S_T2}, s{S_T2}, s{K2_OFF+n}
        s_add_u32 s{S_T2}, s{S_T2}, s{S_T1}
        s_add_u32 m0, s{K2_LDS}, {n*1024}
        s_nop 0
        buffer_load_dwordx4 v8, {WSR}, s{S_T2} offen {sc} lds""")
    a(f"""s_add_u32 s{K2_STG}, s{K2_STG}, 1
    s_add_u32 s{K2_LDS}, s{K2_LDS}, {p.SLOT}
    s_cmp_eq_u32 s{K2_LDS}, s{S_T4}
    s_cselect_b32 s{K2_LDS}, s{S_T5}, s{K2_LDS}
    s_cmp_lt_u32 s{S_CNT}, 1
    s_cbranch_scc0 L2_p_w
    s_waitcnt vmcnt(6)
L2_p_w:
    s_waitcnt vmcnt({(p.NS2 - 3)*6})
    s_barrier
    s_add_u32 s{S_CNT}, s{S_CNT}, 1
    s_cmp_lt_u32 s{S_CNT}, {NSTG}
    s_cbranch_scc1 L2_p_loop""")
    stamp(a, p, 4)
    write_stamps(a, p, 7, 0)
    a("s_endpgm")

def EPI2(p): return P2RING(p)

def p2_consumer(a, p):
    a.label("L2_c")
    if p.prioC2 is not None: a(f"s_setprio {p.prioC2}")
    ACC = 16; FR = 40; NFR = 12; D = p.D2; XR = 96
    VA, VB = 1, 6
    OS_ = f"s[{K2_SRD_O}:{K2_SRD_O+3}]"
    srd(a, S_SRD_X, 4, 5, 2048*1280)
    srd(a, K2_SRD_O, S_OUTP, S_OUTP+1, 2048*1280)
    a(f"""v_mul_u32_u24 v2, 6554, v0
    v_lshrrev_b32 v2, 16, v2
    v_mul_u32_u24 v3, 10, v2
    v_sub_u32 v3, v0, v3
    s_lshl_b32 s{S_T0}, s{S_RT2}, 6
    s_lshl_b32 s{S_T1}, s{S_WAVE}, 4
    s_add_u32 s{S_T0}, s{S_T0}, s{S_T1}
    s_mul_i32 s{S_T0}, s{S_T0}, 1280
    s_mul_i32 s{S_T1}, s{S_CT2}, 160
    s_add_u32 s{S_T0}, s{S_T0}, s{S_T1}
    v_mul_u32_u24 v4, 1280, v2
    v_lshl_add_u32 v4, v3, 4, v4
    v_add_u32 v4, s{S_T0}, v4
    v_mov_b32 v5, {OOB}
    v_cmp_gt_u32 vcc, 60, v0
    v_cndmask_b32 v10, v5, v4, vcc
    v_add_u32 v4, {6*1280}, v4
    v_cndmask_b32 v11, v5, v4, vcc
    v_add_u32 v4, {6*1280}, v4
    v_cmp_gt_u32 vcc, 40, v0
    v_cndmask_b32 v12, v5, v4, vcc
    s_mul_i32 s{S_T5}, s{S_WAVE}, 5376
    s_add_u32 s{S_T5}, s{S_T5}, {EPI2(p)}
    v_mul_u32_u24 v13, 336, v2
    v_lshl_add_u32 v13, v3, 5, v13
    v_add_u32 v13, s{S_T5}, v13
    v_lshlrev_b32 v{VB}, 4, v0
    s_lshl_b32 s{S_T0}, s{S_WAVE}, 10
    v_add_u32 v{VA}, s{S_T0}, v{VB}
    s_mov_b32 s{S_WSLOT}, 0
    s_mov_b32 s{S_SLOTC}, {p.SLOT}
    s_mov_b32 s{S_NEGW}, {-(p.NS2-1)*p.SLOT & 0xffffffff}
    s_mov_b32 s{S_CNT}, 0
    s_cmp_eq_u32 s{S_ROLE}, 0
    s_cbranch_scc1 L2_c_q
    {'' if (p.staged or p.wflags) else 's_waitcnt vmcnt(0)'}
    s_barrier""")
    a.label("L2_c_q")
    for r in range(ACC, ACC+20): a(f"v_mov_b32 v{r}, 0")
    def resid(): a(f"""buffer_load_dwordx4 v[{XR}:{XR+3}], v10, {XS}, 0 offen
    buffer_load_dwordx4 v[{XR+4}:{XR+7}], v11, {XS}, 0 offen
    buffer_load_dwordx4 v[{XR+8}:{XR+11}], v12, {XS}, 0 offen""")
    if not p.residiter: resid()
    a("s_barrier")
    if p.latestore and p.ostiter == 0:
        lh = a.newlabel("L2_nost")
        a(f"s_cmp_eq_u32 s{S_ROLE}, 0\ns_cbranch_scc0 {lh}")
        o_stores(a, p, S_OST)
        a.label(lh)
    trk = LgkmTracker()
    def rd(f, tag):
        d = FR + 4*f
        h, q = divmod(f, 6)
        if p.p2noread and q > 1: return
        if q == 0: a(f"ds_read_b128 v[{d}:{d+3}], v{VA} offset:{h*4096}")
        else: a(f"ds_read_b128 v[{d}:{d+3}], v{VB} offset:{8192 + (h*5 + q - 1)*1024}")
        trk.issue(tag)
    for f in range(D): rd(f, ('f', 0, f))
    a.label("L2_c_loop")
    start_q = list(trk.q)
    nread = D
    for h in range(2):
        for i in range(5):
            fa = h*6; fb = h*6 + 1 + i
            trk.wait_for(a, {('f', 0, fa), ('f', 0, fb)})
            a(f"v_mfma_f32_16x16x32_bf16 v[{ACC+4*i}:{ACC+4*i+3}], v[{FR+4*fb}:{FR+4*fb+3}], v[{FR+4*fa}:{FR+4*fa+3}], v[{ACC+4*i}:{ACC+4*i+3}]")
            cnt = 2 if i == 0 else 1
            for _ in range(cnt):
                if nread == NFR:
                    a(f"""s_add_u32 s{S_WSLOT}, s{S_WSLOT}, 1
                    s_cmp_eq_u32 s{S_WSLOT}, {p.NS2}
                    s_cselect_b32 s{S_WDELTA}, s{S_NEGW}, s{S_SLOTC}
                    s_cselect_b32 s{S_WSLOT}, 0, s{S_WSLOT}
                    v_add_u32 v{VA}, s{S_WDELTA}, v{VA}
                    v_add_u32 v{VB}, s{S_WDELTA}, v{VB}""")
                if nread < NFR: rd(nread, ('f', 0, nread))
                else: rd(nread - NFR, ('f', 1, nread - NFR))
                nread += 1
    assert nread == NFR + D
    lw = a.newlabel("L2_nw")
    drain_it = (p.ostiter + p.fqiter - 1) if p.latestore else 1
    a(f"s_cmp_eq_u32 s{S_CNT}, {drain_it}\ns_cbranch_scc0 {lw}\ns_waitcnt vmcnt(0)")
    a.label(lw)
    if p.latestore and p.ostiter > 0:
        a(f"s_cmp_eq_u32 s{S_CNT}, {p.ostiter - 1}\ns_cbranch_scc1 L2_hook_st")
        a.label("L2_hook_st_back")
    if p.residiter:
        a(f"s_cmp_eq_u32 s{S_CNT}, {p.residiter}\ns_cbranch_scc1 L2_hook_rs")
        a.label("L2_hook_rs_back")
    a("s_barrier")
    endq = [('f', 0, t[2]) for t in trk.q]
    assert endq == start_q[len(start_q)-len(endq):], (endq, start_q)
    a(f"""s_add_u32 s{S_CNT}, s{S_CNT}, 1
    s_cmp_lt_u32 s{S_CNT}, {NSTG}
    s_cbranch_scc1 L2_c_loop
    s_waitcnt lgkmcnt(0)""")
    a(f"""v_and_b32 v2, 15, v0
    v_lshrrev_b32 v3, 4, v0
    v_mul_u32_u24 v2, 336, v2
    v_lshl_add_u32 v2, v3, 4, v2
    v_add_u32 v2, s{S_T5}, v2
    s_nop 7""")
    for i in range(5):
        a(f"ds_write_b128 v2, v[{ACC+4*i}:{ACC+4*i+3}] offset:{i*64}")
    a("s_waitcnt lgkmcnt(0)")
    T = 40
    for k in range(3):
        a(f"ds_read_b128 v[{T+8*k}:{T+8*k+3}], v13 offset:{k*6*336}")
        a(f"ds_read_b128 v[{T+8*k+4}:{T+8*k+7}], v13 offset:{k*6*336+16}")
    a("s_waitcnt vmcnt(0) lgkmcnt(0)")
    for k in range(3):
        for q in range(4):
            xr = XR + 4*k + q
            a(f"""v_lshlrev_b32 v4, 16, v{xr}
            v_and_b32 v5, 0xffff0000, v{xr}
            v_add_f32 v4, v4, v{T+8*k+2*q}
            v_add_f32 v5, v5, v{T+8*k+2*q+1}
            v_cvt_pk_bf16_f32 v{xr}, v4, v5""")
        a(f"buffer_store_dwordx4 v[{XR+4*k}:{XR+4*k+3}], v{10+k}, {OS_}, 0 offen {p.outflags}")
    if p.stamps:
        write_stamps(a, p, 7, 0)
    a("s_endpgm")
    if p.latestore and p.ostiter > 0:
        a.label("L2_hook_st")
        a(f"s_cmp_eq_u32 s{S_ROLE}, 0\ns_cbranch_scc0 L2_hook_st_back")
        o_stores(a, p, S_OST)
        a("s_branch L2_hook_st_back")
    if p.residiter:
        a.label("L2_hook_rs")
        resid()
        a("s_branch L2_hook_rs_back")

def gen_k1(p):
    a = Asm()
    a.label("L_text_begin")
    k1_entry(a, p)
    producer(a, p)
    p2_producer(a, p)
    utility(a, p)
    for role in ('Q', 'H'):
        consumer_entry(a, p, role)
        for w in range(4): consumer_loop(a, p, role, w)
        (epilogue_qkv if role == 'Q' else epilogue_h)(a, p)
    p2_consumer(a, p)
    a.label("L1_exit")
    lines, n = hazard.fix(a.lines)
    return "\n".join(lines) + "\n", n

K1NAME = "parallel_sum__sliding_local_dilated__dense_activation_relu__prompt_kernel"
def kdesc(name):
    return f""".amdhsa_kernel {name}
  .amdhsa_next_free_vgpr 256
  .amdhsa_next_free_sgpr 102
  .amdhsa_accum_offset 256
  .amdhsa_group_segment_fixed_size 0
  .amdhsa_kernarg_size 72
  .amdhsa_user_sgpr_count 2
  .amdhsa_user_sgpr_kernarg_segment_ptr 1
  .amdhsa_system_sgpr_workgroup_id_x 1
  .amdhsa_float_denorm_mode_32 3
.end_amdhsa_kernel
"""
HEADER = """; Kernarg layout for this problem (72 bytes, ptrs only, base s[0:1]):
;   offset  40: d_in[5] B_w2  shape=(1728, 640) dtype=bfloat16 strides=(1280, 2) contiguous=True
;   offset  64: d_ws      268435456 bytes workspace
"""
DOC = """; ---------------------------------------------------------------------------------------------
;   mean/rstd are computed once per token (8 rows per workgroup) and exchanged through d_ws (counter in d_debug).
;   role H (128 WGs): h = relu(LN(x).w1) as MFMA fragments; its utility wave re-lays [wo; w2] out in fragment order.
; Phase 2 (K = 2368): out = x + [o | h].[wo; w2], 64x80 tile per workgroup, operands streamed by LDS-DMA.
; Hand-offs between workgroups: write-through stores, s_waitcnt, then a flag in d_ws (cleared by its owner at start;
; ---------------------------------------------------------------------------------------------
"""
def gen_file(p):
    t1, n1 = gen_k1(p)
    lds = 163840
    s = HEADER
    s += f"; @launch grid=(256,1,1) block=(512,1,1) lds={lds}\n"
    s += '.amdgcn_target "amdgcn-amd-amdhsa--gfx950"\n.text\n' + DOC
    s += f".globl {K1NAME}\n.p2align 8\n.type {K1NAME},@function\n{K1NAME}:\n{t1}  s_endpgm\n"
    s += "L_text_end:\n"
    s += '.section .rodata,"a"\n.p2align 6\n' + kdesc(K1NAME)
    return s
```
